```python
import torch

def _softmax(x, axis=-1):
    return torch.softmax(x, dim=axis)
def _gelu(x):
    return torch.nn.functional.gelu(x, approximate="tanh")
def _silu(x):
    return torch.nn.functional.silu(x)
def _sigmoid(x):
    return torch.sigmoid(x)
def _layernorm(x, axis=-1, eps=1e-5):
    m = x.mean(dim=axis, keepdim=True)
    v = x.var(dim=axis, keepdim=True, unbiased=False)
    return (x - m) / torch.sqrt(v + eps)
def _scatter_add(tgt, idx, src, axis=0):
    return tgt.clone().index_add_(axis, idx, src)
def _segment_sum(src, seg, n):
    out = torch.zeros((n,) + src.shape[1:], dtype=src.dtype)
    return out.index_add_(0, seg, src)
def _pad(x, pw):
    flat = tuple(v for pair in reversed(pw) for v in pair)
    return torch.nn.functional.pad(x, flat)

kernel_name = 'gated_mix__sliding_block_cached__dense_activation_gelu__decode'

def setup_inputs():

    _w = (lambda a: (lambda t: t.to(torch.bfloat16) if t.is_floating_point() else t)(torch.as_tensor(a)))
    def _A_setup():
        B, Sq, D = 1, 1, 512
        Hq, Hkv, Sk, Dh = 32, 8, 65536, 128
        assert Hq % Hkv == 0, (Hq, Hkv)
        return {
            "x": _w((lambda *s: torch.randn(*s, dtype=torch.bfloat16) * 0.05)(B, Sq, D)),
            "k_cache": _w((lambda *s: torch.randn(*s, dtype=torch.bfloat16) * 3.2)(B, Hkv, Sk, Dh)),
            "v_cache": _w((lambda *s: torch.randn(*s, dtype=torch.bfloat16) * 0.4)(B, Hkv, Sk, Dh)),
            "wq": _w((lambda *s: torch.randn(*s, dtype=torch.bfloat16) * 3.2)(D, Hq * Dh) * (D ** -0.5)),
            "wo": _w((lambda *s: torch.randn(*s, dtype=torch.bfloat16) * 0.4)(Hq * Dh, D) * ((Hq * Dh) ** -0.5)),
        }
    _A_in = _A_setup()

    def _B_setup():
        B, S, D, F = 1, 1, 512, 1792
        return {
            "x": _w((lambda *s: torch.randn(*s, dtype=torch.bfloat16) * 0.05)(B, S, D)),
            "w1": _w((lambda *s: torch.randn(*s, dtype=torch.bfloat16) * 0.2)(D, F) * (D ** -0.5)),
            "b1": _w((lambda *s: torch.randn(*s, dtype=torch.bfloat16) * 0.2)(F) * 0.01),
            "w2": _w((lambda *s: torch.randn(*s, dtype=torch.bfloat16) * 0.2)(F, D) * (F ** -0.5)),
            "b2": _w((lambda *s: torch.randn(*s, dtype=torch.bfloat16) * 0.05)(D) * 0.01),
        }
    _B_in = _B_setup()

    return {
        "A_x": _A_in["x"],
        "A_k_cache": _A_in["k_cache"],
        "A_v_cache": _A_in["v_cache"],
        "A_wq": _A_in["wq"],
        "A_wo": _A_in["wo"],
        "B_x": _B_in["x"],
        "B_w1": _B_in["w1"],
        "B_b1": _B_in["b1"],
        "B_w2": _B_in["w2"],
        "B_b2": _B_in["b2"],
        "gate_w": _w((lambda *s: torch.randn(*s, dtype=torch.bfloat16) * 0.1)(512) * 16.0),
    }

def reference(A_x, A_k_cache, A_v_cache, A_wq, A_wo, B_x, B_w1, B_b1, B_w2, B_b2, gate_w):
    def _A_ref(x, k_cache, v_cache, wq, wo):
        B, Sq, D = x.shape
        Hq, Dh = 32, 128
        Hkv, Sk = k_cache.shape[1], k_cache.shape[2]
        W = min(4096, max(256, Sk // 4))
        rep = Hq // Hkv
        q = (lambda x, *d: x.permute(*d))((x @ wq).reshape(B, Sq, Hq, Dh), 0, 2, 1, 3)
        k = (lambda x, n, axis: torch.repeat_interleave(x, n, dim=axis))(k_cache[:, :, Sk - W:, :], rep, axis=1)
        v = (lambda x, n, axis: torch.repeat_interleave(x, n, dim=axis))(v_cache[:, :, Sk - W:, :], rep, axis=1)
        scores = torch.einsum("bhqd,bhkd->bhqk", q, k) * (Dh ** -0.5)
        p = _softmax(scores, axis=-1)
        o = torch.einsum("bhqk,bhkd->bhqd", p, v)
        return (lambda x, *d: x.permute(*d))(o, 0, 2, 1, 3).reshape(B, Sq, Hq * Dh) @ wo

    def _B_ref(x, w1, b1, w2, b2):
        h = torch.einsum("bsd,df->bsf", x, w1) + b1
        h = _gelu(h)
        return torch.einsum("bsf,fd->bsd", h, w2) + b2

    x = A_x
    g = _sigmoid((x * gate_w).sum(-1, keepdims=True))
    a = _A_ref(x, A_k_cache, A_v_cache, A_wq, A_wo)
    b = _B_ref(x, B_w1, B_b1, B_w2, B_b2)
    return g * a + (1 - g) * b
```

```python
KN = "gated_mix__sliding_block_cached__dense_activation_gelu__decode"
def header(grid, block, lds=0):
    return [f"; @launch grid=({grid},1,1) block=({block},1,1) lds={lds}",
            '.amdgcn_target "amdgcn-amd-amdhsa--gfx950"', ".text", f".globl {KN}_kernel", ".p2align 8",
            f".type {KN}_kernel,@function", f"{KN}_kernel:"]
def footer(vgpr=128, sgpr=96, accum=None):
    accum = accum or ((vgpr + 3) // 4 * 4)
    return ['.section .rodata,"a"', ".p2align 6", f".amdhsa_kernel {KN}_kernel",
            f"  .amdhsa_next_free_vgpr {vgpr}", f"  .amdhsa_next_free_sgpr {sgpr}", f"  .amdhsa_accum_offset {accum}",
            "  .amdhsa_group_segment_fixed_size 0", "  .amdhsa_kernarg_size 112", "  .amdhsa_user_sgpr_count 2",
            "  .amdhsa_user_sgpr_kernarg_segment_ptr 1", "  .amdhsa_system_sgpr_workgroup_id_x 1", ".end_amdhsa_kernel"]
```

```python
import sys, struct, math
from common import *

opts = {}
for o in (sys.argv[2].split(",") if len(sys.argv) > 2 else []):
    k, _, v = o.partition("=")
    opts[k] = v
STAMPS = "stamps" in opts
NT = "" if "nont" in opts else " nt"
SLOW = "slow" in opts
B0K = int(opts.get("b0k", -1))
XK = int(opts.get("xk", 2))
NPA = int(opts.get("npa", 6))
WFIRST = "wfirst" in opts
D = int(opts.get("D", 10))

def f32(x): return "0x%08x" % struct.unpack("<I", struct.pack("<f", x))[0]

QS, HS, C2, BS, C1, QB, ST = 0x10000, 0x20000, 0x8000, 0x40000, 0x140000, 0x290000, 0x400000
L_Q = 0; L_H = 1280; L_G = 1296; L_F = 1304; L_ML = 1344; L_JUNK = 1536; L_O = 2048
LDS_BYTES = 2048 + 4 * 2304
SPIN = 0x100000

L = header(256, 384, LDS_BYTES); A = L.append
def stamp(k):
    if STAMPS: A(f"  s_memrealtime s[{64+2*k}:{65+2*k}]")
def stamp_store():
    if not STAMPS: return
    A("  s_waitcnt lgkmcnt(0)")
    A("  s_mul_i32 s60, s2, 6")
    A("  s_add_u32 s60, s60, s34")
    A("  s_lshl_b32 s60, s60, 7")
    A(f"  s_add_u32 s60, s60, {ST}")
    A("  v_mov_b32 v4, s60")
    A("  s_mov_b64 exec, 1")
    for k in range(16):
        A(f"  v_mov_b32 v6, s{64+2*k}")
        A(f"  v_mov_b32 v7, s{65+2*k}")
        A(f"  global_store_dwordx2 v4, v[6:7], s[30:31] offset:{8*k}")
        A("  s_nop 1")
def tag_compute():
    A("  s_and_b32 s36, s35, 0xfffffff8")
    A("  s_add_u32 s36, s36, 0x9e3779b8")
def store2(ins):
    n = store2.n; store2.n += 1
    A("  s_cmp_eq_u32 s57, 0")
    A(f"  s_cbranch_scc1 Lslow{n}")
    A(f"  {ins}")
    A(f"  s_branch Lsd{n}")
    A(f"Lslow{n}:")
    A(f"  {ins} sc1")
    A(f"Lsd{n}:")
store2.n = 0
def red8(regs, tmp, op="add"):
    for r in regs: A(f"  v_{op}_f32_dpp v{r}, v{r}, v{r} row_ror:8 row_mask:0xf bank_mask:0xf")
    for sw in ("32", "16"):
        for r, t in zip(regs, tmp): A(f"  v_mov_b32 v{t}, v{r}")
        A(f"  s_nop {max(0, 2 - len(regs))}")
        for r, t in zip(regs, tmp): A(f"  v_permlane{sw}_swap_b32 v{r}, v{t}")
        for r, t in zip(regs, tmp): A(f"  v_{op}_f32 v{r}, v{r}, v{t}")
def mpoll(name, loads, checks, pend, cnt="s42"):
    for p in pend: A(f"  s_mov_b64 {p}, -1")
    A(f"  s_mov_b32 {cnt}, 0")
    A(f"L{name}poll:")
    for i, ld in enumerate(loads):
        A(f"  s_mov_b64 exec, {pend[i]}")
        A(f"  s_cbranch_execz L{name}s{i}")
        A(f"  {ld}")
        A(f"L{name}s{i}:")
    A("  s_mov_b64 exec, -1")
    A(f"  s_add_u32 {cnt}, {cnt}, 1")
    A("  s_waitcnt vmcnt(0)")
    checks()
    if len(pend) == 4:
        A(f"  s_or_b64 s[40:41], {pend[0]}, {pend[1]}")
        A(f"  s_or_b64 vcc, {pend[2]}, {pend[3]}")
        A(f"  s_or_b64 s[40:41], s[40:41], vcc")
    else:
        A(f"  s_cmp_lg_u64 {pend[0]}, 0")
    A(f"  s_cbranch_scc0 L{name}got")
    A(f"  s_cmp_lt_u32 {cnt}, {SPIN}")
    A(f"  s_cbranch_scc1 L{name}poll")
    A(f"L{name}got:")

DR = 32
if STAMPS: A("  s_memrealtime s[64:65]")
A("  s_load_dwordx16 s[4:19], s[0:1], 0")
A("  s_load_dwordx8 s[20:27], s[0:1], 64")
A("  s_load_dwordx4 s[28:31], s[0:1], 96")
A("  v_lshrrev_b32 v1, 6, v0")
A("  v_and_b32 v2, 63, v0")
A("  s_cmp_ge_u32 s2, 256")
A("  v_readfirstlane_b32 s34, v1")
A("  s_cbranch_scc1 Lend")
A("  s_and_b32 s32, s2, 7")
A("  s_lshr_b32 s33, s2, 3")
A("  s_cmp_ge_u32 s34, 2")
A("  s_cbranch_scc1 LA")
A("  s_lshl_b32 s37, s32, 10")
A("  s_lshr_b32 s38, s33, 2")
A("  s_lshl_b32 s38, s38, 7")
A("  s_add_u32 s37, s37, s38")
A("  s_and_b32 s39, s33, 3")
A("  s_lshl_b32 s38, s39, 20")
A("  s_add_u32 s37, s37, s38")
A("  s_lshl_b32 s39, s39, 8")
A(f"  s_mul_i32 s38, s32, {64*3584}")
A("  s_lshl_b32 s40, s33, 7")
A("  s_add_u32 s38, s38, s40")
A("  s_lshl_b32 s40, s32, 7")
A("  s_movk_i32 s52, 28672")
A("  s_movk_i32 s55, 3584")
A("  s_cmp_eq_u32 s34, 0")
A("  s_cselect_b32 s37, s37, s38")
A("  s_cselect_b32 s39, s39, s40")
A("  s_cselect_b32 s52, 0x20000, s52")
A("  s_cselect_b32 s55, 0x2000, s55")
A("  s_cselect_b32 s53, 5, 4")
A("  v_lshrrev_b32 v4, 3, v2")
A("  v_and_b32 v3, 7, v2")
A("  v_mul_u32_u24 v5, s52, v4")
A("  v_lshlrev_b32 v6, 4, v3")
A("  v_add3_u32 v5, v5, v6, s37")
A("  v_lshlrev_b32 v6, s53, v4")
A("  v_add_u32 v6, s39, v6")
A("  s_cbranch_scc1 Lnpf")
A("  s_getpc_b64 s[40:41]")
A("Lpc:")
A("  v_lshlrev_b32 v7, 7, v2")
A("  v_min_u32 v7, Lend-Lpc, v7")
A("  global_load_dword v27, v7, s[40:41]")
A("  s_cmp_ge_u32 s33, 28")
A("  s_cbranch_scc1 LMskip")
A("  s_cmp_eq_u32 s34, 0")
A("Lnpf:")
A("  s_setprio 3")
A("  s_waitcnt lgkmcnt(0)")
stamp(1)
A("  s_cselect_b64 s[40:41], s[10:11], s[16:17]")
A("  global_load_dwordx4 v[8:11], v6, s[4:5]")
A("  s_cbranch_scc0 Lgo")
A("  global_load_dwordx4 v[12:15], v6, s[4:5] offset:16")
A("Lgo:")
for i in range(8):
    A(f"  global_load_dwordx4 v[{DR+4*i}:{DR+4*i+3}], v5, s[40:41]{NT}")
    A(f"  v_add_u32 v5, s55, v5")
A("  s_cbranch_scc0 LM")

XM, AC = 96, 128
for i in range(8, 16):
    A(f"  global_load_dwordx4 v[{DR+4*i}:{DR+4*i+3}], v5, s[40:41]{NT}")
    if i < 15: A("  v_add_u32 v5, s55, v5")
if B0K < 0: A("  s_barrier")
A("  s_load_dword s35, s[30:31], 0")
A("  s_getreg_b32 s39, hwreg(HW_REG_XCC_ID)")
stamp(2)
for c in range(8): A(f"  v_mov_b32 v{AC+c}, 0")
A("  s_and_b32 s39, s39, 7")
A("  s_lshl_b32 s37, s32, 13")
A(f"  s_add_u32 s37, s37, {QS}")
A("  s_lshl_b32 s38, s33, 8")
A("  s_add_u32 s38, s38, s37")
A("  v_lshrrev_b32 v5, 5, v2")
A("  v_lshlrev_b32 v5, 7, v5")
A("  v_lshl_add_u32 v5, v3, 4, v5")
A("  v_add_u32 v5, s38, v5")
A(f"  v_add_u32 v7, {QB-QS}, v5")
A("  v_lshlrev_b32 v6, 10, v4")
A("  v_lshl_add_u32 v6, v3, 4, v6")
A("  v_add_u32 v6, s37, v6")
A("  v_lshrrev_b32 v140, 4, v2")
A("  v_mul_u32_u24 v140, 320, v140")
A("  v_and_b32 v141, 15, v2")
A("  v_lshl_add_u32 v140, v141, 4, v140")
A("  s_lshl_b32 s37, s32, 17")
A("  s_lshl_b32 s38, s33, 12")
A("  s_add_u32 s37, s37, s38")
A(f"  s_add_u32 s37, s37, {C1}")
A("  v_lshl_add_u32 v141, v2, 4, s37")
A("  s_lshl_b32 s37, s33, 10")
A(f"  s_add_u32 s37, s37, {C2}")
A("  v_lshl_add_u32 v142, v2, 4, s37")
A("  s_lshl_b32 s38, s32, 7")
A("  v_add_u32 v143, s38, v142")
A("  s_lshl_b32 s37, s33, 5")
A("  v_lshl_add_u32 v144, v3, 2, s37")
A("  s_min_u32 s49, s33, 27")
A("  s_lshl_b32 s37, s49, 12")
A("  s_lshl_b32 s38, s32, 6")
A("  s_add_u32 s38, s38, s37")
A(f"  s_add_u32 s38, s38, {HS}")
A("  v_lshlrev_b32 v146, 9, v4")
A("  v_lshl_add_u32 v146, v3, 3, v146")
A("  v_add_u32 v146, s38, v146")
A("  s_lshl_b32 s37, s49, 7")
A("  s_lshl_b32 s38, s32, 4")
A("  s_add_u32 s37, s37, s38")
A("  v_lshl_add_u32 v147, v3, 1, s37")
A("  v_lshlrev_b32 v148, 1, v3")
A(f"  v_add_u32 v148, {L_H}, v148")
A("  s_mov_b32 s44, 0x07060503")
A("  s_mov_b32 s45, 0x07060502")
A("  s_mov_b32 s46, 0x07060501")
A("  s_mov_b32 s47, 0x04000c0c")
A("  s_mov_b32 s48, 0x0706000c")
A("  s_waitcnt vmcnt(16)")
for k in range(8):
    A(f"  v_and_b32 v{XM+4*k}, 0xffff, v{8+k}")
    A(f"  v_lshlrev_b32 v{XM+1+4*k}, 16, v{8+k}")
    A(f"  v_lshrrev_b32 v{XM+2+4*k}, 16, v{8+k}")
    A(f"  v_and_b32 v{XM+3+4*k}, 0xffff0000, v{8+k}")
for i in range(16):
    A(f"  s_waitcnt vmcnt({15-i})")
    if i == 0: stamp(3)
    if i == B0K: A("  s_barrier")
    for c in range(4):
        A(f"  v_dot2c_f32_bf16 v{AC+2*c}, v{DR+4*i+c}, v{XM+2*i}")
        A(f"  v_dot2c_f32_bf16 v{AC+1+2*c}, v{DR+4*i+c}, v{XM+1+2*i}")
stamp(4)
A("  s_waitcnt lgkmcnt(0)")
tag_compute()
A("  s_or_b32 s43, s36, s39")
for c in range(4): A(f"  v_permlane32_swap_b32 v{AC+c}, v{AC+4+c}")
for c in range(4): A(f"  v_add_f32 v{AC+c}, v{AC+c}, v{AC+4+c}")
for c in range(4): A(f"  v_add_f32_dpp v{AC+c}, v{AC+c}, v{AC+c} row_ror:8 row_mask:0xf bank_mask:0xf")
for c in range(4): A(f"  v_mov_b32 v{AC+4+c}, v{AC+c}")
for c in range(4): A(f"  v_permlane16_swap_b32 v{AC+c}, v{AC+4+c}")
for c in range(4): A(f"  v_add_f32 v{AC+c}, v{AC+c}, v{AC+4+c}")
for c in range(3): A(f"  v_perm_b32 v{AC+c}, v{AC+c}, v{AC+3}, s{44+c}")
A(f"  v_add3_u32 v{AC+3}, v{AC}, v{AC+1}, v{AC+2}")
A(f"  v_add_u32 v{AC+3}, s43, v{AC+3}")
A("  s_mov_b32 exec_lo, 0xff")
A("  s_mov_b32 exec_hi, 0xff")
A(f"  global_store_dwordx4 v5, v[{AC}:{AC+3}], s[30:31]")
A(f"  global_store_dwordx4 v7, v[{AC}:{AC+3}], s[30:31] sc1")
A("  s_mov_b64 exec, -1")
A("  global_load_ushort v149, v147, s[18:19]")
A("  global_load_dword v145, v144, s[22:23]")
A("  s_mov_b32 s42, 0")
stamp(5)
A("  s_barrier")
if "touch" in opts:
    A("  global_load_dword v152, v141, s[30:31]")
    A("  global_load_dword v153, v142, s[30:31]")
for _ in range(int(opts.get("acks", 1))):
    A("  global_load_dword v154, v144, s[22:23]")
    A("  s_waitcnt vmcnt(0)")
stamp(14)
A("LQpoll:")
A(f"  s_cmp_lt_u32 s42, {NPA}")
A("  s_cbranch_scc1 LQpa")
A(f"  v_xor_b32 v6, {QB^QS}, v6")
A("LQpa:")
for ks in range(4):
    for hf in range(2):
        r = DR + (ks*2+hf)*4
        A(f"  global_load_dwordx4 v[{r}:{r+3}], v6, s[30:31] offset:{ks*256+hf*128} sc1")
A("  global_load_dwordx2 v[150:151], v146, s[30:31] sc1")
A("  s_add_u32 s42, s42, 1")
for gI in range(8):
    r = DR + gI*4
    A(f"  s_waitcnt vmcnt({8-gI})")
    A(f"  v_add3_u32 v{8+gI}, v{r}, v{r+1}, v{r+2}")
    A(f"  v_sub_u32 v{8+gI}, v{r+3}, v{8+gI}")
    A(f"  v_xor_b32 v{8+gI}, s43, v{8+gI}")
    A(f"  v_perm_b32 v{r+3}, v{r}, v{r+1}, s47")
    A(f"  v_perm_b32 v{r+3}, v{r+3}, v{r+2}, s48")
A("  v_or3_b32 v8, v8, v9, v10")
A("  v_or3_b32 v11, v11, v12, v13")
A("  v_or3_b32 v8, v8, v14, v15")
A("  v_or_b32 v8, v8, v11")
A("  v_cmp_le_u32 vcc, 8, v8")
A("  s_cbranch_vccz LQgot")
A(f"  s_cmp_lt_u32 s42, {SPIN}")
A("  s_cbranch_scc1 LQpoll")
A("LQgot:")
for c in range(8): A(f"  v_add_f32 v{DR+c}, v{DR+c}, v{DR+8+c}")
for c in range(8): A(f"  v_add_f32 v{DR+16+c}, v{DR+16+c}, v{DR+24+c}")
for c in range(8): A(f"  v_add_f32 v{DR+c}, v{DR+c}, v{DR+16+c}")
for c in range(4): A(f"  v_cvt_pk_bf16_f32 v{DR+8+c}, v{DR+2*c}, v{DR+2*c+1}")
A(f"  ds_write_b128 v140, v[{DR+8}:{DR+11}]")
A("  v_cmp_ne_u32 vcc, 0, v8")
A("  s_cmp_eq_u64 vcc, 0")
A("  s_cselect_b32 s57, 1, 0")
if SLOW: A("  s_mov_b32 s57, 0")
A(f"  v_mov_b32 v3, {L_F}")
A("  v_mov_b32 v4, s57")
A("  ds_write_b32 v3, v4")
if STAMPS: A("  s_mov_b32 s90, s42"); A("  s_mov_b32 s91, 0")
stamp(6)
A("  s_waitcnt lgkmcnt(0)")
A("  s_barrier")
A(f"  v_mov_b32 v3, {L_G}")
A("  ds_read_b64 v[4:5], v3")
A("  s_mov_b32 s42, 0")
A("  s_branch LHchk")
A("LHpoll:")
A("  global_load_dwordx2 v[150:151], v146, s[30:31] sc1")
A("  s_add_u32 s42, s42, 1")
A("LHchk:")
A("  s_waitcnt vmcnt(0)")
A("  v_xor_b32 v9, v150, v151")
A("  v_cmp_ne_u32 vcc, s36, v9")
A("  s_cbranch_vccz LHgot")
A(f"  s_cmp_lt_u32 s42, {SPIN}")
A("  s_cbranch_scc1 LHpoll")
A("LHgot:")
A("  v_mov_b32 v8, v150")
A("  s_cmp_lt_u32 s33, 28")
A("  s_cselect_b32 s40, -1, 0")
red8([8], [9])
A("  v_cvt_pk_bf16_f32 v8, v8, v8")
A("  v_lshlrev_b32 v149, 16, v149")
A("  v_lshlrev_b32 v8, 16, v8")
A("  v_add_f32 v8, v8, v149")
A("  v_cvt_pk_bf16_f32 v8, v8, v8")
A("  v_lshlrev_b32 v8, 16, v8")
k1 = -2.0 * math.log2(math.e) * math.sqrt(2.0 / math.pi)
k2 = k1 * 0.044715
A(f"  s_mov_b32 s41, {f32(k2)}")
A(f"  v_mov_b32 v10, {f32(k1)}")
A("  v_mul_f32 v9, v8, v8")
A("  v_fma_f32 v9, v9, s41, v10")
A("  v_mul_f32 v9, v9, v8")
A("  v_exp_f32 v9, v9")
A("  s_nop 0")
A("  v_add_f32 v9, 1.0, v9")
A("  v_rcp_f32 v9, v9")
A("  s_nop 0")
A("  v_mul_f32 v8, v8, v9")
A("  s_nop 1")
A("  v_mov_b32_dpp v9, v8 quad_perm:[1,0,3,2] row_mask:0xf bank_mask:0xf")
A("  v_cvt_pk_bf16_f32 v8, v8, v9")
A("  v_and_b32 v8, s40, v8")
A("  s_mov_b64 exec, 0x55")
A("  ds_write_b32 v148, v8")
A("  s_mov_b64 exec, -1")
stamp(12)
A("  s_waitcnt lgkmcnt(0)")
A("  s_barrier")
stamp(7)
PQ = ["s[44:45]", "s[46:47]", "s[48:49]", "s[50:51]"]
def chkF():
    for i in range(4): A(f"  v_add3_u32 v{24+i}, v{8+4*i}, v{9+4*i}, s36")
    for i in range(4): A(f"  v_cmp_ne_u32 {PQ[i]}, v{24+i}, v{10+4*i}")
mpoll("F", [f"global_load_dwordx3 v[{8+4*i}:{10+4*i}], v141, s[30:31] offset:{1024*i} sc1" for i in range(4)], chkF, PQ)
stamp(8)
A("  v_add_f32 v8, v8, v12")
A("  v_add_f32 v9, v9, v13")
A("  v_add_f32 v16, v16, v20")
A("  v_add_f32 v17, v17, v21")
A("  v_add_f32 v8, v8, v16")
A("  v_add_f32 v9, v9, v17")
A("  s_nop 0")
red8([8, 9], [10, 11])
A("  v_add3_u32 v10, v8, v9, s36")
A("  s_mov_b64 exec, 0xff")
A("  global_store_dwordx3 v143, v[8:10], s[30:31] sc1")
A("  s_mov_b64 exec, -1")
stamp(9)
A("  s_and_b32 s37, s33, 7")
A("  s_cmp_lg_u32 s37, s32")
A("  s_cbranch_scc1 LQend")
def chkG():
    A("  v_add3_u32 v16, v12, v13, s36")
    A(f"  v_cmp_ne_u32 {PQ[0]}, v16, v14")
mpoll("G", ["global_load_dwordx3 v[12:14], v142, s[30:31] sc1"], chkG, PQ[:1])
stamp(10)
red8([12, 13], [10, 11])
A("  v_lshlrev_b32 v10, 16, v145")
A("  v_and_b32 v11, 0xffff0000, v145")
A("  v_fmac_f32 v12, v5, v10")
A("  v_fmac_f32 v13, v5, v11")
A("  v_cvt_pk_bf16_f32 v8, v12, v13")
A("  s_mov_b64 exec, 0xff")
A("  global_store_dword v144, v8, s[26:27]")
A("  s_cmp_lg_u32 s2, 0")
A("  s_cbranch_scc1 LQend")
A("  s_mov_b64 exec, 1")
A("  v_mov_b32 v3, 0")
A("  v_mov_b32 v9, s36")
A("  global_store_dword v3, v9, s[30:31]")
A("LQend:")
stamp(11)
stamp_store()
A("  s_endpgm")

def gate_loads():
    A("  v_lshlrev_b32 v6, 4, v2")
    A("  global_load_dwordx4 v[16:19], v6, s[4:5]")
    A("  global_load_dwordx4 v[20:23], v6, s[24:25]")
def gate_compute():
    for k in range(4):
        A(f"  v_lshlrev_b32 v{80+2*k}, 16, v{16+k}")
        A(f"  v_and_b32 v{81+2*k}, 0xffff0000, v{16+k}")
        A(f"  v_lshlrev_b32 v{88+2*k}, 16, v{20+k}")
        A(f"  v_and_b32 v{89+2*k}, 0xffff0000, v{20+k}")
    for k in range(8): A(f"  v_mul_f32 v{80+k}, v{80+k}, v{88+k}")
    for k in range(4): A(f"  v_cvt_pk_bf16_f32 v{88+k}, v{80+2*k}, v{81+2*k}")
    for k in range(4):
        A(f"  v_lshlrev_b32 v{80+2*k}, 16, v{88+k}")
        A(f"  v_and_b32 v{81+2*k}, 0xffff0000, v{88+k}")
    for k in range(4): A(f"  v_add_f32 v{80+2*k}, v{80+2*k}, v{81+2*k}")
    A("  v_add_f32 v80, v80, v82")
    A("  v_add_f32 v84, v84, v86")
    A("  v_add_f32 v80, v80, v84")
    for sw in ("32", "16"):
        A("  v_mov_b32 v81, v80")
        A("  s_nop 1")
        A(f"  v_permlane{sw}_swap_b32 v80, v81")
        A("  v_add_f32 v80, v80, v81")
    for r in (8, 4, 2, 1):
        A("  s_nop 1")
        A(f"  v_add_f32_dpp v80, v80, v80 row_ror:{r} row_mask:0xf bank_mask:0xf")
    A("  v_cvt_pk_bf16_f32 v80, v80, v80")
    A("  v_lshlrev_b32 v80, 16, v80")
    A(f"  v_mul_f32 v80, {f32(-math.log2(math.e))}, v80")
    A("  v_exp_f32 v80, v80")
    A("  s_nop 0")
    A("  v_add_f32 v80, 1.0, v80")
    A("  v_rcp_f32 v80, v80")
    A("  s_nop 0")
    A("  v_cvt_pk_bf16_f32 v80, v80, v80")
    A("  v_lshlrev_b32 v80, 16, v80")
    A("  v_sub_f32 v81, 1.0, v80")
    A("  v_cvt_pk_bf16_f32 v81, v81, v81")
    A("  v_lshlrev_b32 v81, 16, v81")
    A(f"  v_mov_b32 v82, {L_G}")
    A("  ds_write_b64 v82, v[80:81]")
A("LMskip:")
A("  s_waitcnt lgkmcnt(0)")
gate_loads()
A("  s_barrier")
A("  s_waitcnt vmcnt(0)")
A("  s_branch LMgate")
A("LM:")
gate_loads()
A("  s_barrier")
A("  s_load_dword s35, s[30:31], 0")
stamp(2)
for c in range(8): A(f"  v_mov_b32 v{AC+c}, 0")
A("  s_lshl_b32 s37, s33, 12")
A(f"  s_add_u32 s37, s37, {HS}")
A("  s_lshl_b32 s38, s32, 9")
A("  s_add_u32 s38, s38, s37")
A("  v_lshl_add_u32 v5, v3, 3, v4")
A("  v_lshl_add_u32 v5, v5, 3, s38")
A("  s_waitcnt vmcnt(10)")
for k in range(4):
    A(f"  v_and_b32 v{XM+4*k}, 0xffff, v{8+k}")
    A(f"  v_lshlrev_b32 v{XM+1+4*k}, 16, v{8+k}")
    A(f"  v_lshrrev_b32 v{XM+2+4*k}, 16, v{8+k}")
    A(f"  v_and_b32 v{XM+3+4*k}, 0xffff0000, v{8+k}")
for i in range(8):
    A(f"  s_waitcnt vmcnt({9-i})")
    for c in range(4):
        A(f"  v_dot2c_f32_bf16 v{AC+2*c}, v{DR+4*i+c}, v{XM+2*i}")
        A(f"  v_dot2c_f32_bf16 v{AC+1+2*c}, v{DR+4*i+c}, v{XM+1+2*i}")
stamp(3)
A("  s_waitcnt lgkmcnt(0)")
tag_compute()
for c in range(4): A(f"  v_permlane32_swap_b32 v{AC+c}, v{AC+4+c}")
for c in range(4): A(f"  v_add_f32 v{AC+c}, v{AC+c}, v{AC+4+c}")
A("  s_nop 0")
for c in range(2): A(f"  v_permlane16_swap_b32 v{AC+c}, v{AC+2+c}")
for c in range(2): A(f"  v_add_f32 v{AC+c}, v{AC+c}, v{AC+2+c}")
A("  s_nop 0")
A(f"  v_add_f32_dpp v{AC}, v{AC}, v{AC} row_ror:8 row_mask:0xf bank_mask:0x3")
A(f"  v_add_f32_dpp v{AC}, v{AC+1}, v{AC+1} row_ror:8 row_mask:0xf bank_mask:0xc")
A(f"  v_xor_b32 v{AC+1}, s36, v{AC}")
A(f"  global_store_dwordx2 v5, v[{AC}:{AC+1}], s[30:31] sc1")
A("  s_waitcnt vmcnt(1)")
A("LMgate:")
gate_compute()
A("  s_waitcnt lgkmcnt(0)")
stamp(4)
A("  s_barrier")
A("  s_barrier")
A("  s_barrier")
stamp_store()
A("  s_endpgm")

KR, VR, VP, WO, W2, QR, PS, SR, AO, AL, ONE, WP = 32, 64, 96, 128, 144, 152, 168, 184, 192, 200, 204, 208
A("LA:")
A("  s_sub_u32 s43, s34, 2")
A("  s_lshl_b32 s54, s32, 24")
A("  s_lshl_b32 s38, s33, 15")
A("  s_add_u32 s54, s54, s38")
A("  s_lshl_b32 s38, s43, 13")
A("  s_add_u32 s54, s54, s38")
A(f"  s_add_u32 s54, s54, {61440*256}")
A("  v_and_b32 v3, 15, v2")
A("  v_lshrrev_b32 v4, 4, v2")
A("  v_lshlrev_b32 v5, 8, v3")
A("  v_lshl_add_u32 v5, v4, 4, v5")
A("  v_add_u32 v5, s54, v5")
A("  v_add_u32 v6, 0x1000, v5")
A("  v_lshlrev_b32 v7, 4, v3")
A("  s_lshl_b32 s37, s32, 19")
A("  s_lshl_b32 s38, s33, 14")
A("  s_add_u32 s37, s37, s38")
A("  s_lshl_b32 s38, s33, 16")
A("  s_lshl_b32 s39, s32, 13")
A("  s_add_u32 s38, s38, s39")
A("  s_lshl_b32 s39, s43, 8")
A("  s_cmp_lt_u32 s33, 28")
A("  s_cselect_b32 s38, s38, s37")
A("  v_lshl_add_u32 v10, v4, 12, v7")
A("  v_add3_u32 v10, v10, s37, s39" if False else "  s_add_u32 s37, s37, s39")
A("  s_add_u32 s38, s38, s39")
A("  v_add_u32 v10, s37, v10")
A("  v_lshl_add_u32 v11, v4, 11, v7")
A("  v_add_u32 v11, s38, v11")
A("  s_cmp_lt_u32 s33, 28")
A("  s_waitcnt lgkmcnt(0)")
A("  s_cselect_b64 s[20:21], s[20:21], s[12:13]")
A("  s_barrier")
stamp(1)
ku = [f"  global_load_dwordx4 v[{KR+(t*4+s_)*4}:{KR+(t*4+s_)*4+3}], v{5+t}, s[6:7] offset:{64*s_}{NT}" for t in range(2) for s_ in range(4)]
wu = [f"  global_load_dwordx4 v[{WO+4*i}:{WO+4*i+3}], v10, s[12:13] offset:{1024*i}{NT}" for i in range(4)] + \
     [f"  global_load_dwordx4 v[{W2+4*i}:{W2+4*i+3}], v11, s[20:21] offset:{1024*i}{NT}" for i in range(2)]
first = (wu + ku) if WFIRST else (ku + wu)
setup = []
B = setup.append
B("  s_load_dword s35, s[30:31], 0")
B("  v_lshl_add_u32 v7, v4, 10, v7")
B("  v_add_u32 v7, s54, v7")
B("  v_add_u32 v8, 0x1000, v7")
for i in range(16): B(f"  v_mov_b32 v{PS+i}, 0")
for i in range(4): B(f"  v_mov_b32 v{ONE+i}, 0x3f803f80")
B("  s_mov_b32 s44, 0x05040100")
B("  s_mov_b32 s45, 0x07060302")
for a in range(4):
    B(f"  s_mov_b32 s{46+2*a}, 0x{(0x000f000f << (4*a)):08x}")
    B(f"  s_mov_b32 s{47+2*a}, 0x{(0x000f000f << (4*a)):08x}")
B("  v_and_b32 v12, 3, v2")
B("  v_mul_u32_u24 v12, 320, v12")
B("  v_lshl_add_u32 v12, v4, 4, v12")
B("  s_mul_i32 s37, s43, 2304")
B(f"  s_add_u32 s37, s37, {L_O}")
B("  v_mul_u32_u24 v13, 544, v4")
B("  v_lshl_add_u32 v13, v3, 4, v13")
B("  v_add_u32 v13, s37, v13")
B("  s_lshl_b32 s37, s43, 3")
B(f"  s_add_u32 s37, s37, {L_ML}")
B("  v_lshl_add_u32 v14, v2, 5, s37")
B(f"  v_lshlrev_b32 v15, 3, v2")
B(f"  v_add_u32 v15, {L_JUNK}, v15")
B("  v_cmp_gt_u32 vcc, 4, v2")
B("  s_nop 1")
B("  v_cndmask_b32 v14, v15, v14, vcc")
B("  v_bfe_u32 v21, v2, 3, 2")
B("  v_lshrrev_b32 v22, 5, v2")
B("  s_lshl_b32 s37, s43, 1")
B("  v_add_u32 v22, s37, v22")
B("  v_and_b32 v23, 3, v2")
B("  v_mul_u32_u24 v15, 544, v23")
B("  v_lshl_add_u32 v15, v22, 5, v15")
B("  v_bfe_u32 v23, v2, 2, 1")
B("  v_lshl_add_u32 v15, v23, 4, v15")
B("  v_lshl_add_u32 v15, v21, 2, v15")
B(f"  v_add_u32 v15, {L_O}, v15")
B("  v_lshlrev_b32 v16, 5, v21")
B(f"  v_add_u32 v16, {L_ML}, v16")
B("  v_lshl_add_u32 v17, v21, 3, v22")
B("  v_lshlrev_b32 v17, 12, v17")
B("  v_and_b32 v23, 7, v2")
B("  v_lshl_add_u32 v17, v23, 4, v17")
B("  s_lshl_b32 s37, s32, 17")
B("  s_lshl_b32 s38, s33, 7")
B("  s_add_u32 s37, s37, s38")
B(f"  s_add_u32 s39, s37, {BS}")
B("  v_add_u32 v17, s39, v17")
B("  v_lshrrev_b32 v19, 1, v3")
B("  v_lshlrev_b32 v19, 12, v19")
B("  v_and_b32 v23, 1, v3")
B("  v_lshl_add_u32 v19, v23, 6, v19")
B("  v_lshl_add_u32 v19, v4, 4, v19")
B("  s_lshl_b32 s38, s43, 15")
B("  s_add_u32 s39, s37, s38")
B(f"  s_add_u32 s39, s39, {C1}")
B("  v_add_u32 v19, s39, v19")
B("  s_lshl_b32 s37, s32, 17")
B("  s_lshl_b32 s38, s33, 12")
B("  s_add_u32 s37, s37, s38")
B(f"  s_add_u32 s37, s37, {BS}")
B("  v_lshrrev_b32 v18, 1, v3")
B("  v_lshlrev_b32 v18, 7, v18")
B("  v_lshl_add_u32 v18, v23, 4, v18")
B("  v_lshl_add_u32 v18, v4, 5, v18")
B("  v_add_u32 v18, s37, v18")
B(f"  v_mov_b32 v20, {L_G}")
B("  v_lshlrev_b32 v9, 2, v4")
B(f"  v_add_u32 v9, {L_H}, v9")
c_sc = (128 ** -0.5) * math.log2(math.e)
B(f"  s_mov_b32 s54, {f32(c_sc)}")
vu = [f"  global_load_dwordx4 v[{VR+(t*4+rr)*4}:{VR+(t*4+rr)*4+3}], v{7+t}, s[8:9] offset:{256*rr}{NT}" for t in range(2) for rr in range(4)]
HB = int(opts.get("hb", 2))
ORD = opts.get("ord", "wv")
seq = (wu + vu if ORD == "wv" else vu + wu) + ku
vdone = 14 if ORD == "wv" else 8
NB = 22 - HB
XW = int(opts.get("xw", vdone))
for x in setup[:4]: A(x)
def wperms():
    for p in range(2):
        for c in range(4):
            a = WO + 8*p + c; b = a + 4
            A(f"  v_perm_b32 v{WP+8*p+2*c}, v{b}, v{a}, s44")
            A(f"  v_perm_b32 v{WP+8*p+2*c+1}, v{b}, v{a}, s45")
    for c in range(4):
        a = W2 + c; b = a + 4
        A(f"  v_perm_b32 v{WP+16+2*c}, v{b}, v{a}, s44")
        A(f"  v_perm_b32 v{WP+16+2*c+1}, v{b}, v{a}, s45")
def vperms():
    for i in range(4):
        t, rp = i >> 1, (i & 1) * 2
        for j in range(8):
            a = VR + (t*4+rp)*4 + (j >> 1); b = VR + (t*4+rp+1)*4 + (j >> 1)
            A(f"  v_perm_b32 v{VP+4*j+i}, v{b}, v{a}, s{44 + (j & 1)}")
NP = int(opts.get("np", 10))
for x in seq[:NP]: A(x)
for y in setup[4:]: A(y)
if "touch" in opts:
    A("  global_load_dword v232, v17, s[30:31]")
    A("  global_load_dword v233, v19, s[30:31]")
    A("  global_load_dword v234, v18, s[30:31]")
stamp(2)
A("  s_barrier")
for x in seq[NP:]: A(x)
stamp(3)
A(f"  s_waitcnt vmcnt(8)")
wperms()
vperms()
stamp(13)
A("  s_barrier")
for s in range(4):
    A(f"  ds_read_b128 v[{QR+4*s}:{QR+4*s+3}], v12 offset:{64*s}")
A("  ds_read_b96 v[28:30], v20")
stamp(4)
A("  s_waitcnt vmcnt(0) lgkmcnt(0)")
stamp(5)
tag_compute()
A("  v_readfirstlane_b32 s57, v30")
for s in range(4):
    for t in range(2):
        r = KR + (t*4+s)*4
        cin = "0" if s == 0 else f"v[{SR+4*t}:{SR+4*t+3}]"
        A(f"  v_mfma_f32_16x16x32_bf16 v[{SR+4*t}:{SR+4*t+3}], v[{r}:{r+3}], v[{QR+4*s}:{QR+4*s+3}], {cin}")
A("  s_nop 7")
A(f"  v_max3_f32 v21, v{SR}, v{SR+1}, v{SR+2}")
A(f"  v_max3_f32 v21, v21, v{SR+3}, v{SR+4}")
A(f"  v_max3_f32 v21, v21, v{SR+5}, v{SR+6}")
A(f"  v_max_f32 v21, v21, v{SR+7}")
for sw in ("32", "16"):
    A("  v_mov_b32 v22, v21")
    A("  s_nop 1")
    A(f"  v_permlane{sw}_swap_b32 v21, v22")
    A("  v_max_f32 v21, v21, v22")
A("  v_mul_f32 v21, s54, v21")
for i in range(8): A(f"  v_fma_f32 v{SR+i}, v{SR+i}, s54, -v21")
for i in range(8): A(f"  v_exp_f32 v{SR+i}, v{SR+i}")
for a in range(4):
    A(f"  s_mov_b64 exec, s[{46+2*a}:{47+2*a}]")
    for i in range(4):
        A(f"  v_cvt_pk_bf16_f32 v{PS+4*a+i}, v{SR+2*i}, v{SR+2*i+1}")
A("  s_mov_b64 exec, -1")
A("  s_nop 0")
A(f"  v_mfma_f32_16x16x32_bf16 v[{AL}:{AL+3}], v[{ONE}:{ONE+3}], v[{PS}:{PS+3}], 0")
stamp(6)
for a in range(4):
    for e in range(2):
        j = 2*a + e
        cin = "0" if a == 0 else f"v[{AO+4*e}:{AO+4*e+3}]"
        A(f"  v_mfma_f32_16x16x32_bf16 v[{AO+4*e}:{AO+4*e+3}], v[{PS+4*a}:{PS+4*a+3}], v[{VP+4*j}:{VP+4*j+3}], {cin}")
A(f"  ds_write2_b32 v14, v21, v{AL} offset0:0 offset1:1")
A("  s_nop 5")
A(f"  ds_write_b128 v13, v[{AO}:{AO+3}]")
A(f"  ds_write_b128 v13, v[{AO+4}:{AO+7}] offset:256")
A("  s_waitcnt lgkmcnt(0)")
stamp(7)
A("  s_barrier")
A(f"  ds_read_b128 v[{KR+8}:{KR+11}], v16")
A(f"  ds_read_b128 v[{KR+12}:{KR+15}], v16 offset:16")
for w in range(4):
    A(f"  ds_read2st64_b32 v[{KR+2*w}:{KR+2*w+1}], v15 offset0:{9*w} offset1:{9*w+1}")
A("  ds_read_b32 v24, v9")
A("  s_waitcnt lgkmcnt(5)" if not STAMPS else "  s_waitcnt lgkmcnt(0)")
m = [KR+8, KR+10, KR+12, KR+14]; l = [x+1 for x in m]
A(f"  v_max3_f32 v21, v{m[0]}, v{m[1]}, v{m[2]}")
A(f"  v_max_f32 v21, v21, v{m[3]}")
for w in range(4): A(f"  v_sub_f32 v{m[w]}, v{m[w]}, v21")
for w in range(4): A(f"  v_exp_f32 v{m[w]}, v{m[w]}")
A(f"  v_mul_f32 v22, v{m[0]}, v{l[0]}")
for w in range(1, 4): A(f"  v_fmac_f32 v22, v{m[w]}, v{l[w]}")
A("  v_rcp_f32 v23, v22")
A("  v_log_f32 v22, v22")
A("  s_waitcnt lgkmcnt(0)")
A(f"  v_mul_f32 v{KR+16}, v{m[0]}, v{KR}")
A(f"  v_mul_f32 v{KR+17}, v{m[0]}, v{KR+1}")
for w in range(1, 4):
    A(f"  v_fmac_f32 v{KR+16}, v{m[w]}, v{KR+2*w}")
    A(f"  v_fmac_f32 v{KR+17}, v{m[w]}, v{KR+2*w+1}")
A(f"  v_add_f32 v{KR+18}, v21, v22")
A(f"  v_mul_f32 v{KR+16}, v{KR+16}, v23")
A(f"  v_mul_f32 v{KR+17}, v{KR+17}, v23")
A(f"  v_add_u32 v{KR+19}, s36, v{KR+18}")
A(f"  v_add3_u32 v{KR+19}, v{KR+16}, v{KR+17}, v{KR+19}")
store2(f"global_store_dwordx4 v17, v[{KR+16}:{KR+19}], s[30:31]")
stamp(8)
BA = VR
for c in range(8): A(f"  v_mov_b32 v{BA+c}, 0")
for c in range(8): A(f"  v_mov_b32 v{BA+8+c}, 0")
for c in range(8): A(f"  v_dot2c_f32_bf16 v{BA+c}, v24, v{WP+16+c}")
A("  s_nop 2")
def redrq(b):
    for c in range(4): A(f"  v_permlane32_swap_b32 v{b+c}, v{b+4+c}")
    for c in range(4): A(f"  v_add_f32 v{b+c}, v{b+c}, v{b+4+c}")
    A("  s_nop 0")
    for c in range(2): A(f"  v_permlane16_swap_b32 v{b+c}, v{b+2+c}")
    for c in range(2): A(f"  v_add_f32 v{b+c}, v{b+c}, v{b+2+c}")
redrq(BA)
A(f"  v_mul_f32 v{BA}, v{BA}, v29")
A(f"  v_mul_f32 v{BA+1}, v{BA+1}, v29")
stamp(9)
PB = VP
PA = ["s[46:47]", "s[48:49]", "s[50:51]", "s[52:53]"]
def chkB():
    for i in range(4): A(f"  v_add3_u32 v{PB+16+i}, v{PB+4*i}, v{PB+4*i+1}, v{PB+4*i+2}")
    for i in range(4): A(f"  v_sub_u32 v{PB+16+i}, v{PB+4*i+3}, v{PB+16+i}")
    for i in range(4): A(f"  v_cmp_ne_u32 {PA[i]}, s36, v{PB+16+i}")
mpoll("B", [f"global_load_dwordx4 v[{PB+4*i}:{PB+4*i+3}], v18, s[30:31] offset:{1024*i} sc1" for i in range(4)], chkB, PA)
stamp(10)
ls = [PB+4*i+2 for i in range(4)]
A(f"  v_max3_f32 v21, v{ls[0]}, v{ls[1]}, v{ls[2]}")
A(f"  v_max_f32 v21, v21, v{ls[3]}")
for r in (2, 4, 8):
    A("  s_nop 1")
    A(f"  v_max_f32_dpp v21, v21, v21 row_ror:{r} row_mask:0xf bank_mask:0xf")
for i in range(4): A(f"  v_sub_f32 v{ls[i]}, v{ls[i]}, v21")
for i in range(4): A(f"  v_exp_f32 v{ls[i]}, v{ls[i]}")
A(f"  v_mul_f32 v22, v{ls[0]}, v{PB}")
A(f"  v_mul_f32 v23, v{ls[0]}, v{PB+1}")
A(f"  v_add_f32 v21, v{ls[0]}, v{ls[1]}")
for i in range(1, 4):
    if i >= 2: A(f"  v_add_f32 v21, v21, v{ls[i]}")
    A(f"  v_fmac_f32 v22, v{ls[i]}, v{PB+4*i}")
    A(f"  v_fmac_f32 v23, v{ls[i]}, v{PB+4*i+1}")
for r in (2, 4, 8):
    for x in (21, 22, 23):
        A(f"  v_add_f32_dpp v{x}, v{x}, v{x} row_ror:{r} row_mask:0xf bank_mask:0xf")
A("  v_rcp_f32 v21, v21")
A("  s_nop 0")
A("  v_mul_f32 v22, v22, v21")
A("  v_mul_f32 v23, v23, v21")
A("  v_cvt_pk_bf16_f32 v22, v22, v23")
A("  s_nop 1")
AA = BA + 8
for p in range(2):
    for c in range(8):
        A(f"  v_dot2c_f32_bf16_dpp v{AA+c}, v22, v{WP+8*p+c} quad_perm:[{p},{p},{p},{p}] row_mask:0xf bank_mask:0xf")
A("  s_nop 2")
redrq(AA)
A(f"  v_fma_f32 v24, v{AA}, v28, v{BA}")
A(f"  v_fma_f32 v25, v{AA+1}, v28, v{BA+1}")
A("  v_add3_u32 v26, v24, v25, s36")
store2("global_store_dwordx3 v19, v[24:26], s[30:31]")
stamp(11)
stamp_store()
A("Lend:")
A("  s_endpgm")
L += footer(236, 100)
open(sys.argv[1], "w").write("\n".join(L) + "\n")
```

```python
import sys, struct, math
from common import *

opts = {}
for o in (sys.argv[2].split(",") if len(sys.argv) > 2 else []):
    k, _, v = o.partition("=")
    opts[k] = v
STAMPS = "stamps" in opts or "dbgst" in opts
DBGST = "dbgst" in opts
NT = "" if "nont" in opts else " nt"
SLOW = "slow" in opts
B0K = int(opts.get("b0k", -1))
XK = int(opts.get("xk", 2))
NPA = int(opts.get("npa", 6))
WFIRST = "wfirst" in opts
D = int(opts.get("D", 10))

def f32(x): return "0x%08x" % struct.unpack("<I", struct.pack("<f", x))[0]

QS, HS, C2, BS, C1, QB, ST = 0x10000, 0x20000, 0x8000, 0x40000, 0x140000, 0x290000, 0x400000
L_Q = 0; L_H = 1280; L_G = 1296; L_F = 1304; L_ML = 1344; L_JUNK = 1536; L_O = 2048
LDS_BYTES = 2048 + 4 * 2304
SPIN = 0x100000

L = header(256, 384, LDS_BYTES); A = L.append
def stamp(k):
    if STAMPS: A(f"  s_memrealtime s[{64+2*k}:{65+2*k}]")
def stamp_store(role="A"):
    if not STAMPS: return
    if DBGST:
        sel = {"Q": [(0, 0, True), (0, 1, False), (5, 2, False), (6, 3, False), (8, 4, False), (9, 5, False), (11, 6, False)],
               "M": [], "A": [(1, 8, False), (3, 9, False), (5, 10, False), (8, 11, False), (10, 12, False), (11, 13, False)]}[role]
        A("  s_waitcnt lgkmcnt(0)")
        A("  s_mov_b64 exec, 1")
        A("  v_mov_b32 v4, 0")
        for k, slot, inv in sel:
            if inv:
                A(f"  s_not_b32 s60, s{64+2*k}")
                A("  v_mov_b32 v6, s60")
            else:
                A(f"  v_mov_b32 v6, s{64+2*k}")
            A(f"  global_atomic_umax v4, v6, s[28:29] offset:{4*slot} sc1")
            A("  s_nop 1")
        if role == "Q":
            A("  v_mov_b32 v6, s57")
            A("  global_atomic_add v4, v6, s[28:29] offset:28 sc1")
            A("  v_mov_b32 v6, s90")
            A("  global_atomic_add v4, v6, s[28:29] offset:56 sc1")
        return
    A("  s_waitcnt lgkmcnt(0)")
    A("  s_mul_i32 s60, s2, 6")
    A("  s_add_u32 s60, s60, s34")
    A("  s_lshl_b32 s60, s60, 7")
    A(f"  s_add_u32 s60, s60, {ST}")
    A("  v_mov_b32 v4, s60")
    A("  s_mov_b64 exec, 1")
    for k in range(16):
        A(f"  v_mov_b32 v6, s{64+2*k}")
        A(f"  v_mov_b32 v7, s{65+2*k}")
        A(f"  global_store_dwordx2 v4, v[6:7], s[30:31] offset:{8*k}")
        A("  s_nop 1")
def tag_compute():
    A("  s_and_b32 s36, s35, 0xfffffff8")
    A("  s_add_u32 s36, s36, 0x9e3779b8")
def store2(ins):
    n = store2.n; store2.n += 1
    A("  s_cmp_eq_u32 s57, 0")
    A(f"  s_cbranch_scc1 Lslow{n}")
    A(f"  {ins}")
    A(f"  s_branch Lsd{n}")
    A(f"Lslow{n}:")
    A(f"  {ins} sc1")
    A(f"Lsd{n}:")
store2.n = 0
def red8(regs, tmp, op="add"):
    for r in regs: A(f"  v_{op}_f32_dpp v{r}, v{r}, v{r} row_ror:8 row_mask:0xf bank_mask:0xf")
    for sw in ("32", "16"):
        for r, t in zip(regs, tmp): A(f"  v_mov_b32 v{t}, v{r}")
        A(f"  s_nop {max(0, 2 - len(regs))}")
        for r, t in zip(regs, tmp): A(f"  v_permlane{sw}_swap_b32 v{r}, v{t}")
        for r, t in zip(regs, tmp): A(f"  v_{op}_f32 v{r}, v{r}, v{t}")
def mpoll(name, loads, checks, pend, cnt="s42"):
    for p in pend: A(f"  s_mov_b64 {p}, -1")
    A(f"  s_mov_b32 {cnt}, 0")
    A(f"L{name}poll:")
    for i, ld in enumerate(loads):
        A(f"  s_mov_b64 exec, {pend[i]}")
        A(f"  s_cbranch_execz L{name}s{i}")
        A(f"  {ld}")
        A(f"L{name}s{i}:")
    A("  s_mov_b64 exec, -1")
    A(f"  s_add_u32 {cnt}, {cnt}, 1")
    A("  s_waitcnt vmcnt(0)")
    checks()
    if len(pend) == 4:
        A(f"  s_or_b64 s[40:41], {pend[0]}, {pend[1]}")
        A(f"  s_or_b64 vcc, {pend[2]}, {pend[3]}")
        A(f"  s_or_b64 s[40:41], s[40:41], vcc")
    else:
        A(f"  s_cmp_lg_u64 {pend[0]}, 0")
    A(f"  s_cbranch_scc0 L{name}got")
    A(f"  s_cmp_lt_u32 {cnt}, {SPIN}")
    A(f"  s_cbranch_scc1 L{name}poll")
    A(f"L{name}got:")

DR = 32
if STAMPS: A("  s_memrealtime s[64:65]")
A("  s_load_dwordx16 s[4:19], s[0:1], 0")
A("  s_load_dwordx8 s[20:27], s[0:1], 64")
A("  s_load_dwordx4 s[28:31], s[0:1], 96")
A("  v_lshrrev_b32 v1, 6, v0")
A("  v_and_b32 v2, 63, v0")
A("  s_cmp_ge_u32 s2, 256")
A("  v_readfirstlane_b32 s34, v1")
A("  s_cbranch_scc1 Lend")
A("  s_and_b32 s32, s2, 7")
A("  s_lshr_b32 s33, s2, 3")
A("  s_cmp_ge_u32 s34, 2")
A("  s_cbranch_scc1 LA")
A("  s_lshl_b32 s37, s32, 10")
A("  s_lshr_b32 s38, s33, 2")
A("  s_lshl_b32 s38, s38, 7")
A("  s_add_u32 s37, s37, s38")
A("  s_and_b32 s39, s33, 3")
A("  s_lshl_b32 s38, s39, 20")
A("  s_add_u32 s37, s37, s38")
A("  s_lshl_b32 s39, s39, 8")
A(f"  s_mul_i32 s38, s32, {64*3584}")
A("  s_lshl_b32 s40, s33, 7")
A("  s_add_u32 s38, s38, s40")
A("  s_lshl_b32 s40, s32, 7")
A("  s_movk_i32 s52, 28672")
A("  s_movk_i32 s55, 3584")
A("  s_cmp_eq_u32 s34, 0")
A("  s_cselect_b32 s37, s37, s38")
A("  s_cselect_b32 s39, s39, s40")
A("  s_cselect_b32 s52, 0x20000, s52")
A("  s_cselect_b32 s55, 0x2000, s55")
A("  s_cselect_b32 s53, 5, 4")
A("  v_lshrrev_b32 v4, 3, v2")
A("  v_and_b32 v3, 7, v2")
A("  v_mul_u32_u24 v5, s52, v4")
A("  v_lshlrev_b32 v6, 4, v3")
A("  v_add3_u32 v5, v5, v6, s37")
A("  v_lshlrev_b32 v6, s53, v4")
A("  v_add_u32 v6, s39, v6")
A("  s_cbranch_scc1 Lnpf")
A("  s_getpc_b64 s[40:41]")
A("Lpc:")
A("  v_lshlrev_b32 v7, 7, v2")
A("  v_min_u32 v7, Lend-Lpc, v7")
A("  global_load_dword v27, v7, s[40:41]")
A("  s_cmp_ge_u32 s33, 28")
A("  s_cbranch_scc1 LMskip")
A("  s_cmp_eq_u32 s34, 0")
A("Lnpf:")
A("  s_setprio 3")
A("  s_waitcnt lgkmcnt(0)")
stamp(1)
A("  s_cselect_b64 s[40:41], s[10:11], s[16:17]")
A("  global_load_dwordx4 v[8:11], v6, s[4:5]")
A("  s_cbranch_scc0 Lgo")
A("  global_load_dwordx4 v[12:15], v6, s[4:5] offset:16")
A("Lgo:")
for i in range(8):
    A(f"  global_load_dwordx4 v[{DR+4*i}:{DR+4*i+3}], v5, s[40:41]{NT}")
    A(f"  v_add_u32 v5, s55, v5")
A("  s_cbranch_scc0 LM")

XM, AC = 96, 128
for i in range(8, 16):
    A(f"  global_load_dwordx4 v[{DR+4*i}:{DR+4*i+3}], v5, s[40:41]{NT}")
    if i < 15: A("  v_add_u32 v5, s55, v5")
if B0K < 0: A("  s_barrier")
A("  s_load_dword s35, s[30:31], 0")
A("  s_getreg_b32 s39, hwreg(HW_REG_XCC_ID)")
stamp(2)
for c in range(8): A(f"  v_mov_b32 v{AC+c}, 0")
A("  s_and_b32 s39, s39, 7")
A("  s_lshl_b32 s37, s32, 13")
A(f"  s_add_u32 s37, s37, {QS}")
A("  s_lshl_b32 s38, s33, 8")
A("  s_add_u32 s38, s38, s37")
A("  v_lshrrev_b32 v5, 5, v2")
A("  v_lshlrev_b32 v5, 7, v5")
A("  v_lshl_add_u32 v5, v3, 4, v5")
A("  v_add_u32 v5, s38, v5")
A(f"  v_add_u32 v7, {QB-QS}, v5")
A("  v_lshlrev_b32 v6, 10, v4")
A("  v_lshl_add_u32 v6, v3, 4, v6")
A("  v_add_u32 v6, s37, v6")
A("  v_lshrrev_b32 v140, 4, v2")
A("  v_mul_u32_u24 v140, 320, v140")
A("  v_and_b32 v141, 15, v2")
A("  v_lshl_add_u32 v140, v141, 4, v140")
A("  s_lshl_b32 s37, s32, 17")
A("  s_lshl_b32 s38, s33, 12")
A("  s_add_u32 s37, s37, s38")
A(f"  s_add_u32 s37, s37, {C1}")
A("  v_lshl_add_u32 v141, v2, 4, s37")
A("  s_lshl_b32 s37, s33, 10")
A(f"  s_add_u32 s37, s37, {C2}")
A("  v_lshl_add_u32 v142, v2, 4, s37")
A("  s_lshl_b32 s38, s32, 7")
A("  v_add_u32 v143, s38, v142")
A("  s_lshl_b32 s37, s33, 5")
A("  v_lshl_add_u32 v144, v3, 2, s37")
A("  s_min_u32 s49, s33, 27")
A("  s_lshl_b32 s37, s49, 12")
A("  s_lshl_b32 s38, s32, 6")
A("  s_add_u32 s38, s38, s37")
A(f"  s_add_u32 s38, s38, {HS}")
A("  v_lshlrev_b32 v146, 9, v4")
A("  v_lshl_add_u32 v146, v3, 3, v146")
A("  v_add_u32 v146, s38, v146")
A("  s_lshl_b32 s37, s49, 7")
A("  s_lshl_b32 s38, s32, 4")
A("  s_add_u32 s37, s37, s38")
A("  v_lshl_add_u32 v147, v3, 1, s37")
A("  v_lshlrev_b32 v148, 1, v3")
A(f"  v_add_u32 v148, {L_H}, v148")
A("  s_mov_b32 s44, 0x07060503")
A("  s_mov_b32 s45, 0x07060502")
A("  s_mov_b32 s46, 0x07060501")
A("  s_mov_b32 s47, 0x04000c0c")
A("  s_mov_b32 s48, 0x0706000c")
A("  s_waitcnt vmcnt(16)")
for k in range(8):
    A(f"  v_and_b32 v{XM+4*k}, 0xffff, v{8+k}")
    A(f"  v_lshlrev_b32 v{XM+1+4*k}, 16, v{8+k}")
    A(f"  v_lshrrev_b32 v{XM+2+4*k}, 16, v{8+k}")
    A(f"  v_and_b32 v{XM+3+4*k}, 0xffff0000, v{8+k}")
for i in range(16):
    A(f"  s_waitcnt vmcnt({15-i})")
    if i == 0: stamp(3)
    if i == B0K: A("  s_barrier")
    for c in range(4):
        A(f"  v_dot2c_f32_bf16 v{AC+2*c}, v{DR+4*i+c}, v{XM+2*i}")
        A(f"  v_dot2c_f32_bf16 v{AC+1+2*c}, v{DR+4*i+c}, v{XM+1+2*i}")
stamp(4)
A("  s_waitcnt lgkmcnt(0)")
tag_compute()
A("  s_or_b32 s43, s36, s39")
for c in range(4): A(f"  v_permlane32_swap_b32 v{AC+c}, v{AC+4+c}")
for c in range(4): A(f"  v_add_f32 v{AC+c}, v{AC+c}, v{AC+4+c}")
for c in range(4): A(f"  v_add_f32_dpp v{AC+c}, v{AC+c}, v{AC+c} row_ror:8 row_mask:0xf bank_mask:0xf")
for c in range(4): A(f"  v_mov_b32 v{AC+4+c}, v{AC+c}")
for c in range(4): A(f"  v_permlane16_swap_b32 v{AC+c}, v{AC+4+c}")
for c in range(4): A(f"  v_add_f32 v{AC+c}, v{AC+c}, v{AC+4+c}")
for c in range(3): A(f"  v_perm_b32 v{AC+c}, v{AC+c}, v{AC+3}, s{44+c}")
A(f"  v_add3_u32 v{AC+3}, v{AC}, v{AC+1}, v{AC+2}")
A(f"  v_add_u32 v{AC+3}, s43, v{AC+3}")
A("  s_mov_b32 exec_lo, 0xff")
A("  s_mov_b32 exec_hi, 0xff")
A(f"  global_store_dwordx4 v5, v[{AC}:{AC+3}], s[30:31]")
A(f"  global_store_dwordx4 v7, v[{AC}:{AC+3}], s[30:31] sc1")
A("  s_mov_b64 exec, -1")
A("  global_load_ushort v149, v147, s[18:19]")
A("  global_load_dword v145, v144, s[22:23]")
A("  s_mov_b32 s42, 0")
stamp(5)
A("  s_barrier")
stamp(14)
A("LQpoll:")
A(f"  s_cmp_lt_u32 s42, {NPA}")
A("  s_cbranch_scc1 LQpa")
A(f"  v_xor_b32 v6, {QB^QS}, v6")
A("LQpa:")
for ks in range(4):
    for hf in range(2):
        r = DR + (ks*2+hf)*4
        A(f"  global_load_dwordx4 v[{r}:{r+3}], v6, s[30:31] offset:{ks*256+hf*128} sc1")
A("  global_load_dwordx2 v[150:151], v146, s[30:31] sc1")
A("  s_add_u32 s42, s42, 1")
for gI in range(8):
    r = DR + gI*4
    A(f"  s_waitcnt vmcnt({8-gI})")
    A(f"  v_add3_u32 v{8+gI}, v{r}, v{r+1}, v{r+2}")
    A(f"  v_sub_u32 v{8+gI}, v{r+3}, v{8+gI}")
    A(f"  v_xor_b32 v{8+gI}, s43, v{8+gI}")
    A(f"  v_perm_b32 v{r+3}, v{r}, v{r+1}, s47")
    A(f"  v_perm_b32 v{r+3}, v{r+3}, v{r+2}, s48")
A("  v_or3_b32 v8, v8, v9, v10")
A("  v_or3_b32 v11, v11, v12, v13")
A("  v_or3_b32 v8, v8, v14, v15")
A("  v_or_b32 v8, v8, v11")
A("  v_cmp_le_u32 vcc, 8, v8")
A("  s_cbranch_vccz LQgot")
A(f"  s_cmp_lt_u32 s42, {SPIN}")
A("  s_cbranch_scc1 LQpoll")
A("LQgot:")
for c in range(8): A(f"  v_add_f32 v{DR+c}, v{DR+c}, v{DR+8+c}")
for c in range(8): A(f"  v_add_f32 v{DR+16+c}, v{DR+16+c}, v{DR+24+c}")
for c in range(8): A(f"  v_add_f32 v{DR+c}, v{DR+c}, v{DR+16+c}")
for c in range(4): A(f"  v_cvt_pk_bf16_f32 v{DR+8+c}, v{DR+2*c}, v{DR+2*c+1}")
A(f"  ds_write_b128 v140, v[{DR+8}:{DR+11}]")
A("  v_cmp_ne_u32 vcc, 0, v8")
A("  s_cmp_eq_u64 vcc, 0")
A("  s_cselect_b32 s57, 1, 0")
if SLOW: A("  s_mov_b32 s57, 0")
A(f"  v_mov_b32 v3, {L_F}")
A("  v_mov_b32 v4, s57")
A("  ds_write_b32 v3, v4")
if STAMPS: A("  s_mov_b32 s90, s42"); A("  s_mov_b32 s91, 0")
stamp(6)
A("  s_waitcnt lgkmcnt(0)")
A("  s_barrier")
A(f"  v_mov_b32 v3, {L_G}")
A("  ds_read_b64 v[4:5], v3")
A("  s_mov_b32 s42, 0")
A("  s_branch LHchk")
A("LHpoll:")
A("  global_load_dwordx2 v[150:151], v146, s[30:31] sc1")
A("  s_add_u32 s42, s42, 1")
A("LHchk:")
A("  s_waitcnt vmcnt(0)")
A("  v_xor_b32 v9, v150, v151")
A("  v_cmp_ne_u32 vcc, s36, v9")
A("  s_cbranch_vccz LHgot")
A(f"  s_cmp_lt_u32 s42, {SPIN}")
A("  s_cbranch_scc1 LHpoll")
A("LHgot:")
A("  v_mov_b32 v8, v150")
A("  s_cmp_lt_u32 s33, 28")
A("  s_cselect_b32 s40, -1, 0")
red8([8], [9])
A("  v_cvt_pk_bf16_f32 v8, v8, v8")
A("  v_lshlrev_b32 v149, 16, v149")
A("  v_lshlrev_b32 v8, 16, v8")
A("  v_add_f32 v8, v8, v149")
A("  v_cvt_pk_bf16_f32 v8, v8, v8")
A("  v_lshlrev_b32 v8, 16, v8")
k1 = -2.0 * math.log2(math.e) * math.sqrt(2.0 / math.pi)
k2 = k1 * 0.044715
A(f"  s_mov_b32 s41, {f32(k2)}")
A(f"  v_mov_b32 v10, {f32(k1)}")
A("  v_mul_f32 v9, v8, v8")
A("  v_fma_f32 v9, v9, s41, v10")
A("  v_mul_f32 v9, v9, v8")
A("  v_exp_f32 v9, v9")
A("  s_nop 0")
A("  v_add_f32 v9, 1.0, v9")
A("  v_rcp_f32 v9, v9")
A("  s_nop 0")
A("  v_mul_f32 v8, v8, v9")
A("  s_nop 1")
A("  v_mov_b32_dpp v9, v8 quad_perm:[1,0,3,2] row_mask:0xf bank_mask:0xf")
A("  v_cvt_pk_bf16_f32 v8, v8, v9")
A("  v_and_b32 v8, s40, v8")
A("  s_mov_b64 exec, 0x55")
A("  ds_write_b32 v148, v8")
A("  s_mov_b64 exec, -1")
stamp(12)
A("  s_waitcnt lgkmcnt(0)")
A("  s_barrier")
stamp(7)
PQ = ["s[44:45]", "s[46:47]", "s[48:49]", "s[50:51]"]
def chkF():
    for i in range(4): A(f"  v_add3_u32 v{24+i}, v{8+4*i}, v{9+4*i}, s36")
    for i in range(4): A(f"  v_cmp_ne_u32 {PQ[i]}, v{24+i}, v{10+4*i}")
mpoll("F", [f"global_load_dwordx3 v[{8+4*i}:{10+4*i}], v141, s[30:31] offset:{1024*i} sc1" for i in range(4)], chkF, PQ)
stamp(8)
A("  v_add_f32 v8, v8, v12")
A("  v_add_f32 v9, v9, v13")
A("  v_add_f32 v16, v16, v20")
A("  v_add_f32 v17, v17, v21")
A("  v_add_f32 v8, v8, v16")
A("  v_add_f32 v9, v9, v17")
A("  s_nop 0")
red8([8, 9], [10, 11])
A("  v_add3_u32 v10, v8, v9, s36")
A("  s_mov_b64 exec, 0xff")
A("  global_store_dwordx3 v143, v[8:10], s[30:31] sc1")
A("  s_mov_b64 exec, -1")
stamp(9)
A("  s_and_b32 s37, s33, 7")
A("  s_cmp_lg_u32 s37, s32")
A("  s_cbranch_scc1 LQend")
def chkG():
    A("  v_add3_u32 v16, v12, v13, s36")
    A(f"  v_cmp_ne_u32 {PQ[0]}, v16, v14")
mpoll("G", ["global_load_dwordx3 v[12:14], v142, s[30:31] sc1"], chkG, PQ[:1])
stamp(10)
red8([12, 13], [10, 11])
A("  v_lshlrev_b32 v10, 16, v145")
A("  v_and_b32 v11, 0xffff0000, v145")
A("  v_fmac_f32 v12, v5, v10")
A("  v_fmac_f32 v13, v5, v11")
A("  v_cvt_pk_bf16_f32 v8, v12, v13")
A("  s_mov_b64 exec, 0xff")
A("  global_store_dword v144, v8, s[26:27]")
A("  s_cmp_lg_u32 s2, 0")
A("  s_cbranch_scc1 LQend")
A("  s_mov_b64 exec, 1")
A("  v_mov_b32 v3, 0")
A("  v_mov_b32 v9, s36")
A("  global_store_dword v3, v9, s[30:31]")
A("LQend:")
stamp(11)
stamp_store('Q')
A("  s_endpgm")

def gate_loads():
    A("  v_lshlrev_b32 v6, 4, v2")
    A("  global_load_dwordx4 v[16:19], v6, s[4:5]")
    A("  global_load_dwordx4 v[20:23], v6, s[24:25]")
def gate_compute():
    for k in range(4):
        A(f"  v_lshlrev_b32 v{80+2*k}, 16, v{16+k}")
        A(f"  v_and_b32 v{81+2*k}, 0xffff0000, v{16+k}")
        A(f"  v_lshlrev_b32 v{88+2*k}, 16, v{20+k}")
        A(f"  v_and_b32 v{89+2*k}, 0xffff0000, v{20+k}")
    for k in range(8): A(f"  v_mul_f32 v{80+k}, v{80+k}, v{88+k}")
    for k in range(4): A(f"  v_cvt_pk_bf16_f32 v{88+k}, v{80+2*k}, v{81+2*k}")
    for k in range(4):
        A(f"  v_lshlrev_b32 v{80+2*k}, 16, v{88+k}")
        A(f"  v_and_b32 v{81+2*k}, 0xffff0000, v{88+k}")
    for k in range(4): A(f"  v_add_f32 v{80+2*k}, v{80+2*k}, v{81+2*k}")
    A("  v_add_f32 v80, v80, v82")
    A("  v_add_f32 v84, v84, v86")
    A("  v_add_f32 v80, v80, v84")
    for sw in ("32", "16"):
        A("  v_mov_b32 v81, v80")
        A("  s_nop 1")
        A(f"  v_permlane{sw}_swap_b32 v80, v81")
        A("  v_add_f32 v80, v80, v81")
    for r in (8, 4, 2, 1):
        A("  s_nop 1")
        A(f"  v_add_f32_dpp v80, v80, v80 row_ror:{r} row_mask:0xf bank_mask:0xf")
    A("  v_cvt_pk_bf16_f32 v80, v80, v80")
    A("  v_lshlrev_b32 v80, 16, v80")
    A(f"  v_mul_f32 v80, {f32(-math.log2(math.e))}, v80")
    A("  v_exp_f32 v80, v80")
    A("  s_nop 0")
    A("  v_add_f32 v80, 1.0, v80")
    A("  v_rcp_f32 v80, v80")
    A("  s_nop 0")
    A("  v_cvt_pk_bf16_f32 v80, v80, v80")
    A("  v_lshlrev_b32 v80, 16, v80")
    A("  v_sub_f32 v81, 1.0, v80")
    A("  v_cvt_pk_bf16_f32 v81, v81, v81")
    A("  v_lshlrev_b32 v81, 16, v81")
    A(f"  v_mov_b32 v82, {L_G}")
    A("  ds_write_b64 v82, v[80:81]")
A("LMskip:")
A("  s_waitcnt lgkmcnt(0)")
gate_loads()
A("  s_barrier")
A("  s_waitcnt vmcnt(0)")
A("  s_branch LMgate")
A("LM:")
gate_loads()
A("  s_barrier")
A("  s_load_dword s35, s[30:31], 0")
stamp(2)
for c in range(8): A(f"  v_mov_b32 v{AC+c}, 0")
A("  s_lshl_b32 s37, s33, 12")
A(f"  s_add_u32 s37, s37, {HS}")
A("  s_lshl_b32 s38, s32, 9")
A("  s_add_u32 s38, s38, s37")
A("  v_lshl_add_u32 v5, v3, 3, v4")
A("  v_lshl_add_u32 v5, v5, 3, s38")
A("  s_waitcnt vmcnt(10)")
for k in range(4):
    A(f"  v_and_b32 v{XM+4*k}, 0xffff, v{8+k}")
    A(f"  v_lshlrev_b32 v{XM+1+4*k}, 16, v{8+k}")
    A(f"  v_lshrrev_b32 v{XM+2+4*k}, 16, v{8+k}")
    A(f"  v_and_b32 v{XM+3+4*k}, 0xffff0000, v{8+k}")
for i in range(8):
    A(f"  s_waitcnt vmcnt({9-i})")
    for c in range(4):
        A(f"  v_dot2c_f32_bf16 v{AC+2*c}, v{DR+4*i+c}, v{XM+2*i}")
        A(f"  v_dot2c_f32_bf16 v{AC+1+2*c}, v{DR+4*i+c}, v{XM+1+2*i}")
stamp(3)
A("  s_waitcnt lgkmcnt(0)")
tag_compute()
for c in range(4): A(f"  v_permlane32_swap_b32 v{AC+c}, v{AC+4+c}")
for c in range(4): A(f"  v_add_f32 v{AC+c}, v{AC+c}, v{AC+4+c}")
A("  s_nop 0")
for c in range(2): A(f"  v_permlane16_swap_b32 v{AC+c}, v{AC+2+c}")
for c in range(2): A(f"  v_add_f32 v{AC+c}, v{AC+c}, v{AC+2+c}")
A("  s_nop 0")
A(f"  v_add_f32_dpp v{AC}, v{AC}, v{AC} row_ror:8 row_mask:0xf bank_mask:0x3")
A(f"  v_add_f32_dpp v{AC}, v{AC+1}, v{AC+1} row_ror:8 row_mask:0xf bank_mask:0xc")
A(f"  v_xor_b32 v{AC+1}, s36, v{AC}")
A(f"  global_store_dwordx2 v5, v[{AC}:{AC+1}], s[30:31] sc1")
A("  s_waitcnt vmcnt(1)")
A("LMgate:")
gate_compute()
A("  s_waitcnt lgkmcnt(0)")
stamp(4)
A("  s_barrier")
A("  s_barrier")
A("  s_barrier")
stamp_store('M')
A("  s_endpgm")

KR, VR, VP, WO, W2, QR, PS, SR, AO, AL, ONE, WP = 32, 64, 96, 128, 144, 152, 168, 184, 192, 200, 204, 208
A("LA:")
A("  s_sub_u32 s43, s34, 2")
A("  s_lshl_b32 s54, s32, 24")
A("  s_lshl_b32 s38, s33, 15")
A("  s_add_u32 s54, s54, s38")
A("  s_lshl_b32 s38, s43, 13")
A("  s_add_u32 s54, s54, s38")
A(f"  s_add_u32 s54, s54, {61440*256}")
A("  v_and_b32 v3, 15, v2")
A("  v_lshrrev_b32 v4, 4, v2")
A("  v_lshlrev_b32 v5, 8, v3")
A("  v_lshl_add_u32 v5, v4, 4, v5")
A("  v_add_u32 v5, s54, v5")
A("  v_add_u32 v6, 0x1000, v5")
A("  v_lshlrev_b32 v7, 4, v3")
A("  s_lshl_b32 s37, s32, 19")
A("  s_lshl_b32 s38, s33, 14")
A("  s_add_u32 s37, s37, s38")
A("  s_lshl_b32 s38, s33, 16")
A("  s_lshl_b32 s39, s32, 13")
A("  s_add_u32 s38, s38, s39")
A("  s_lshl_b32 s39, s43, 8")
A("  s_cmp_lt_u32 s33, 28")
A("  s_cselect_b32 s38, s38, s37")
A("  v_lshl_add_u32 v10, v4, 12, v7")
A("  v_add3_u32 v10, v10, s37, s39" if False else "  s_add_u32 s37, s37, s39")
A("  s_add_u32 s38, s38, s39")
A("  v_add_u32 v10, s37, v10")
A("  v_lshl_add_u32 v11, v4, 11, v7")
A("  v_add_u32 v11, s38, v11")
A("  s_cmp_lt_u32 s33, 28")
A("  s_waitcnt lgkmcnt(0)")
A("  s_cselect_b64 s[20:21], s[20:21], s[12:13]")
A("  s_barrier")
stamp(1)
ku = [f"  global_load_dwordx4 v[{KR+(t*4+s_)*4}:{KR+(t*4+s_)*4+3}], v{5+t}, s[6:7] offset:{64*s_}{NT}" for t in range(2) for s_ in range(4)]
wu = [f"  global_load_dwordx4 v[{WO+4*i}:{WO+4*i+3}], v10, s[12:13] offset:{1024*i}{NT}" for i in range(4)] + \
     [f"  global_load_dwordx4 v[{W2+4*i}:{W2+4*i+3}], v11, s[20:21] offset:{1024*i}{NT}" for i in range(2)]
first = (wu + ku) if WFIRST else (ku + wu)
setup = []
B = setup.append
B("  s_load_dword s35, s[30:31], 0")
B("  v_lshl_add_u32 v7, v4, 10, v7")
B("  v_add_u32 v7, s54, v7")
B("  v_add_u32 v8, 0x1000, v7")
for i in range(16): B(f"  v_mov_b32 v{PS+i}, 0")
for i in range(4): B(f"  v_mov_b32 v{ONE+i}, 0x3f803f80")
B("  s_mov_b32 s44, 0x05040100")
B("  s_mov_b32 s45, 0x07060302")
for a in range(4):
    B(f"  s_mov_b32 s{46+2*a}, 0x{(0x000f000f << (4*a)):08x}")
    B(f"  s_mov_b32 s{47+2*a}, 0x{(0x000f000f << (4*a)):08x}")
B("  v_and_b32 v12, 3, v2")
B("  v_mul_u32_u24 v12, 320, v12")
B("  v_lshl_add_u32 v12, v4, 4, v12")
B("  s_mul_i32 s37, s43, 2304")
B(f"  s_add_u32 s37, s37, {L_O}")
B("  v_mul_u32_u24 v13, 544, v4")
B("  v_lshl_add_u32 v13, v3, 4, v13")
B("  v_add_u32 v13, s37, v13")
B("  s_lshl_b32 s37, s43, 3")
B(f"  s_add_u32 s37, s37, {L_ML}")
B("  v_lshl_add_u32 v14, v2, 5, s37")
B(f"  v_lshlrev_b32 v15, 3, v2")
B(f"  v_add_u32 v15, {L_JUNK}, v15")
B("  v_cmp_gt_u32 vcc, 4, v2")
B("  s_nop 1")
B("  v_cndmask_b32 v14, v15, v14, vcc")
B("  v_bfe_u32 v21, v2, 3, 2")
B("  v_lshrrev_b32 v22, 5, v2")
B("  s_lshl_b32 s37, s43, 1")
B("  v_add_u32 v22, s37, v22")
B("  v_and_b32 v23, 3, v2")
B("  v_mul_u32_u24 v15, 544, v23")
B("  v_lshl_add_u32 v15, v22, 5, v15")
B("  v_bfe_u32 v23, v2, 2, 1")
B("  v_lshl_add_u32 v15, v23, 4, v15")
B("  v_lshl_add_u32 v15, v21, 2, v15")
B(f"  v_add_u32 v15, {L_O}, v15")
B("  v_lshlrev_b32 v16, 5, v21")
B(f"  v_add_u32 v16, {L_ML}, v16")
B("  v_lshl_add_u32 v17, v21, 3, v22")
B("  v_lshlrev_b32 v17, 12, v17")
B("  v_and_b32 v23, 7, v2")
B("  v_lshl_add_u32 v17, v23, 4, v17")
B("  s_lshl_b32 s37, s32, 17")
B("  s_lshl_b32 s38, s33, 7")
B("  s_add_u32 s37, s37, s38")
B(f"  s_add_u32 s39, s37, {BS}")
B("  v_add_u32 v17, s39, v17")
B("  v_lshrrev_b32 v19, 1, v3")
B("  v_lshlrev_b32 v19, 12, v19")
B("  v_and_b32 v23, 1, v3")
B("  v_lshl_add_u32 v19, v23, 6, v19")
B("  v_lshl_add_u32 v19, v4, 4, v19")
B("  s_lshl_b32 s38, s43, 15")
B("  s_add_u32 s39, s37, s38")
B(f"  s_add_u32 s39, s39, {C1}")
B("  v_add_u32 v19, s39, v19")
B("  s_lshl_b32 s37, s32, 17")
B("  s_lshl_b32 s38, s33, 12")
B("  s_add_u32 s37, s37, s38")
B(f"  s_add_u32 s37, s37, {BS}")
B("  v_lshrrev_b32 v18, 1, v3")
B("  v_lshlrev_b32 v18, 7, v18")
B("  v_lshl_add_u32 v18, v23, 4, v18")
B("  v_lshl_add_u32 v18, v4, 5, v18")
B("  v_add_u32 v18, s37, v18")
B(f"  v_mov_b32 v20, {L_G}")
B("  v_lshlrev_b32 v9, 2, v4")
B(f"  v_add_u32 v9, {L_H}, v9")
c_sc = (128 ** -0.5) * math.log2(math.e)
B(f"  s_mov_b32 s54, {f32(c_sc)}")
vu = [f"  global_load_dwordx4 v[{VR+(t*4+rr)*4}:{VR+(t*4+rr)*4+3}], v{7+t}, s[8:9] offset:{256*rr}{NT}" for t in range(2) for rr in range(4)]
HB = int(opts.get("hb", 2))
ORD = opts.get("ord", "wv")
seq = (wu + vu if ORD == "wv" else vu + wu) + ku
vdone = 14 if ORD == "wv" else 8
NB = 22 - HB
XW = int(opts.get("xw", vdone))
for x in setup[:4]: A(x)
def wperms():
    for p in range(2):
        for c in range(4):
            a = WO + 8*p + c; b = a + 4
            A(f"  v_perm_b32 v{WP+8*p+2*c}, v{b}, v{a}, s44")
            A(f"  v_perm_b32 v{WP+8*p+2*c+1}, v{b}, v{a}, s45")
    for c in range(4):
        a = W2 + c; b = a + 4
        A(f"  v_perm_b32 v{WP+16+2*c}, v{b}, v{a}, s44")
        A(f"  v_perm_b32 v{WP+16+2*c+1}, v{b}, v{a}, s45")
def vperms():
    for i in range(4):
        t, rp = i >> 1, (i & 1) * 2
        for j in range(8):
            a = VR + (t*4+rp)*4 + (j >> 1); b = VR + (t*4+rp+1)*4 + (j >> 1)
            A(f"  v_perm_b32 v{VP+4*j+i}, v{b}, v{a}, s{44 + (j & 1)}")
for i, x in enumerate(seq[:NB]):
    if i == D and "latesetup" not in opts:
        for y in setup[4:]: A(y)
    if i >= D: A(f"  s_waitcnt vmcnt({D-1})")
    A(x)
if D >= NB and "latesetup" not in opts:
    for y in setup[4:]: A(y)
stamp(2)
if "diag" in opts:
    A("  s_waitcnt vmcnt(0)")
    stamp(14)
A(f"  s_waitcnt vmcnt({NB-XW})")
if "latesetup" in opts:
    for y in setup[4:]: A(y)
A("  s_barrier")
if XW >= 14:
    wperms()
else:
    for _ in range(2): A("  s_nop 15")
for x in seq[NB:]: A(x)
stamp(3)
A(f"  s_waitcnt vmcnt(8)")
if XW < 14: wperms()
vperms()
stamp(13)
A("  s_barrier")
for s in range(4):
    A(f"  ds_read_b128 v[{QR+4*s}:{QR+4*s+3}], v12 offset:{64*s}")
A("  ds_read_b96 v[28:30], v20")
stamp(4)
A("  s_waitcnt vmcnt(0) lgkmcnt(0)")
stamp(5)
tag_compute()
A("  v_readfirstlane_b32 s57, v30")
for s in range(4):
    for t in range(2):
        r = KR + (t*4+s)*4
        cin = "0" if s == 0 else f"v[{SR+4*t}:{SR+4*t+3}]"
        A(f"  v_mfma_f32_16x16x32_bf16 v[{SR+4*t}:{SR+4*t+3}], v[{r}:{r+3}], v[{QR+4*s}:{QR+4*s+3}], {cin}")
A("  s_nop 7")
A(f"  v_max3_f32 v21, v{SR}, v{SR+1}, v{SR+2}")
A(f"  v_max3_f32 v21, v21, v{SR+3}, v{SR+4}")
A(f"  v_max3_f32 v21, v21, v{SR+5}, v{SR+6}")
A(f"  v_max_f32 v21, v21, v{SR+7}")
for sw in ("32", "16"):
    A("  v_mov_b32 v22, v21")
    A("  s_nop 1")
    A(f"  v_permlane{sw}_swap_b32 v21, v22")
    A("  v_max_f32 v21, v21, v22")
A("  v_mul_f32 v21, s54, v21")
for i in range(8): A(f"  v_fma_f32 v{SR+i}, v{SR+i}, s54, -v21")
for i in range(8): A(f"  v_exp_f32 v{SR+i}, v{SR+i}")
for a in range(4):
    A(f"  s_mov_b64 exec, s[{46+2*a}:{47+2*a}]")
    for i in range(4):
        A(f"  v_cvt_pk_bf16_f32 v{PS+4*a+i}, v{SR+2*i}, v{SR+2*i+1}")
A("  s_mov_b64 exec, -1")
A("  s_nop 0")
A(f"  v_mfma_f32_16x16x32_bf16 v[{AL}:{AL+3}], v[{ONE}:{ONE+3}], v[{PS}:{PS+3}], 0")
stamp(6)
for a in range(4):
    for e in range(2):
        j = 2*a + e
        cin = "0" if a == 0 else f"v[{AO+4*e}:{AO+4*e+3}]"
        A(f"  v_mfma_f32_16x16x32_bf16 v[{AO+4*e}:{AO+4*e+3}], v[{PS+4*a}:{PS+4*a+3}], v[{VP+4*j}:{VP+4*j+3}], {cin}")
A(f"  ds_write2_b32 v14, v21, v{AL} offset0:0 offset1:1")
A("  s_nop 5")
A(f"  ds_write_b128 v13, v[{AO}:{AO+3}]")
A(f"  ds_write_b128 v13, v[{AO+4}:{AO+7}] offset:256")
A("  s_waitcnt lgkmcnt(0)")
stamp(7)
A("  s_barrier")
A(f"  ds_read_b128 v[{KR+8}:{KR+11}], v16")
A(f"  ds_read_b128 v[{KR+12}:{KR+15}], v16 offset:16")
for w in range(4):
    A(f"  ds_read2st64_b32 v[{KR+2*w}:{KR+2*w+1}], v15 offset0:{9*w} offset1:{9*w+1}")
A("  ds_read_b32 v24, v9")
A("  s_waitcnt lgkmcnt(5)" if not STAMPS else "  s_waitcnt lgkmcnt(0)")
m = [KR+8, KR+10, KR+12, KR+14]; l = [x+1 for x in m]
A(f"  v_max3_f32 v21, v{m[0]}, v{m[1]}, v{m[2]}")
A(f"  v_max_f32 v21, v21, v{m[3]}")
for w in range(4): A(f"  v_sub_f32 v{m[w]}, v{m[w]}, v21")
for w in range(4): A(f"  v_exp_f32 v{m[w]}, v{m[w]}")
A(f"  v_mul_f32 v22, v{m[0]}, v{l[0]}")
for w in range(1, 4): A(f"  v_fmac_f32 v22, v{m[w]}, v{l[w]}")
A("  v_rcp_f32 v23, v22")
A("  v_log_f32 v22, v22")
A("  s_waitcnt lgkmcnt(0)")
A(f"  v_mul_f32 v{KR+16}, v{m[0]}, v{KR}")
A(f"  v_mul_f32 v{KR+17}, v{m[0]}, v{KR+1}")
for w in range(1, 4):
    A(f"  v_fmac_f32 v{KR+16}, v{m[w]}, v{KR+2*w}")
    A(f"  v_fmac_f32 v{KR+17}, v{m[w]}, v{KR+2*w+1}")
A(f"  v_add_f32 v{KR+18}, v21, v22")
A(f"  v_mul_f32 v{KR+16}, v{KR+16}, v23")
A(f"  v_mul_f32 v{KR+17}, v{KR+17}, v23")
A(f"  v_add_u32 v{KR+19}, s36, v{KR+18}")
A(f"  v_add3_u32 v{KR+19}, v{KR+16}, v{KR+17}, v{KR+19}")
store2(f"global_store_dwordx4 v17, v[{KR+16}:{KR+19}], s[30:31]")
stamp(8)
BA = VR
for c in range(8): A(f"  v_mov_b32 v{BA+c}, 0")
for c in range(8): A(f"  v_mov_b32 v{BA+8+c}, 0")
for c in range(8): A(f"  v_dot2c_f32_bf16 v{BA+c}, v24, v{WP+16+c}")
A("  s_nop 2")
def redrq(b):
    for c in range(4): A(f"  v_permlane32_swap_b32 v{b+c}, v{b+4+c}")
    for c in range(4): A(f"  v_add_f32 v{b+c}, v{b+c}, v{b+4+c}")
    A("  s_nop 0")
    for c in range(2): A(f"  v_permlane16_swap_b32 v{b+c}, v{b+2+c}")
    for c in range(2): A(f"  v_add_f32 v{b+c}, v{b+c}, v{b+2+c}")
redrq(BA)
A(f"  v_mul_f32 v{BA}, v{BA}, v29")
A(f"  v_mul_f32 v{BA+1}, v{BA+1}, v29")
stamp(9)
PB = VP
PA = ["s[46:47]", "s[48:49]", "s[50:51]", "s[52:53]"]
def chkB():
    for i in range(4): A(f"  v_add3_u32 v{PB+16+i}, v{PB+4*i}, v{PB+4*i+1}, v{PB+4*i+2}")
    for i in range(4): A(f"  v_sub_u32 v{PB+16+i}, v{PB+4*i+3}, v{PB+16+i}")
    for i in range(4): A(f"  v_cmp_ne_u32 {PA[i]}, s36, v{PB+16+i}")
mpoll("B", [f"global_load_dwordx4 v[{PB+4*i}:{PB+4*i+3}], v18, s[30:31] offset:{1024*i} sc1" for i in range(4)], chkB, PA)
stamp(10)
ls = [PB+4*i+2 for i in range(4)]
A(f"  v_max3_f32 v21, v{ls[0]}, v{ls[1]}, v{ls[2]}")
A(f"  v_max_f32 v21, v21, v{ls[3]}")
for r in (2, 4, 8):
    A("  s_nop 1")
    A(f"  v_max_f32_dpp v21, v21, v21 row_ror:{r} row_mask:0xf bank_mask:0xf")
for i in range(4): A(f"  v_sub_f32 v{ls[i]}, v{ls[i]}, v21")
for i in range(4): A(f"  v_exp_f32 v{ls[i]}, v{ls[i]}")
A(f"  v_mul_f32 v22, v{ls[0]}, v{PB}")
A(f"  v_mul_f32 v23, v{ls[0]}, v{PB+1}")
A(f"  v_add_f32 v21, v{ls[0]}, v{ls[1]}")
for i in range(1, 4):
    if i >= 2: A(f"  v_add_f32 v21, v21, v{ls[i]}")
    A(f"  v_fmac_f32 v22, v{ls[i]}, v{PB+4*i}")
    A(f"  v_fmac_f32 v23, v{ls[i]}, v{PB+4*i+1}")
for r in (2, 4, 8):
    for x in (21, 22, 23):
        A(f"  v_add_f32_dpp v{x}, v{x}, v{x} row_ror:{r} row_mask:0xf bank_mask:0xf")
A("  v_rcp_f32 v21, v21")
A("  s_nop 0")
A("  v_mul_f32 v22, v22, v21")
A("  v_mul_f32 v23, v23, v21")
A("  v_cvt_pk_bf16_f32 v22, v22, v23")
A("  s_nop 1")
AA = BA + 8
for p in range(2):
    for c in range(8):
        A(f"  v_dot2c_f32_bf16_dpp v{AA+c}, v22, v{WP+8*p+c} quad_perm:[{p},{p},{p},{p}] row_mask:0xf bank_mask:0xf")
A("  s_nop 2")
redrq(AA)
A(f"  v_fma_f32 v24, v{AA}, v28, v{BA}")
A(f"  v_fma_f32 v25, v{AA+1}, v28, v{BA+1}")
A("  v_add3_u32 v26, v24, v25, s36")
store2("global_store_dwordx3 v19, v[24:26], s[30:31]")
stamp(11)
stamp_store()
A("Lend:")
A("  s_endpgm")
L += footer(232, 100)
open(sys.argv[1], "w").write("\n".join(L) + "\n")
```

```python
import sys, struct, math
from common import *

opts = {}
for o in (sys.argv[2].split(",") if len(sys.argv) > 2 else []):
    k, _, v = o.partition("=")
    opts[k] = v
STAMPS = "stamps" in opts
NT = " nt"
SLOW = "slow" in opts
NPA = int(opts.get("npa", 6))
W1G = int(opts.get("w1g", 4))
BX = "nobx" not in opts
PIPE = "nopipe" not in opts
PIPEB = "pipeb" in opts

def f32(x): return "0x%08x" % struct.unpack("<I", struct.pack("<f", x))[0]

QS, HS, C2, BS, C1, QB, ST = 0x10000, 0x20000, 0x8000, 0x40000, 0x140000, 0x290000, 0x400000
SLOWOFF = 0x800000
L_Q = 0; L_H = 1280; L_G = 1296; L_F = 1304; L_ML = 1344; L_C = 1472; L_HF = 1308; L_JUNK = 1600; L_O = 2304
LDS_BYTES = L_O + 4 * 2304
SPIN = 0x100000

L = header(256, 384, LDS_BYTES); A = L.append
def stamp(k):
    if STAMPS: A(f"  s_memrealtime s[{64+2*k}:{65+2*k}]")
def stamp_store():
    if not STAMPS: return
    A("  s_waitcnt lgkmcnt(0)")
    A("  s_mul_i32 s60, s2, 6")
    A("  s_add_u32 s60, s60, s34")
    A("  s_lshl_b32 s60, s60, 7")
    A(f"  s_add_u32 s60, s60, {ST}")
    A("  v_mov_b32 v4, s60")
    A("  s_mov_b64 exec, 1")
    for k in range(16):
        A(f"  v_mov_b32 v6, s{64+2*k}")
        A(f"  v_mov_b32 v7, s{65+2*k}")
        A(f"  global_store_dwordx2 v4, v[6:7], s[30:31] offset:{8*k}")
        A("  s_nop 1")
def lgkm(n):
    A(f"  s_waitcnt lgkmcnt({0 if STAMPS else n})")
def tag_compute():
    A("  s_and_b32 s36, s35, 0xfffffff8")
    A("  s_add_u32 s36, s36, 0x9e3779b8")
def base58():
    A('  s_cmp_eq_u32 s57, 0')
    A(f'  s_cselect_b32 s58, {SLOWOFF}, 0')
    A('  s_add_u32 s58, s30, s58')
    A('  s_addc_u32 s59, s31, 0')
def store2(ins):
    n = store2.n; store2.n += 1
    A("  s_cmp_eq_u32 s57, 0")
    A(f"  s_cbranch_scc1 Lslow{n}")
    A(f"  {ins}")
    A(f"Lsd{n}:")
    store2.tail.append((n, ins))
store2.n = 0; store2.tail = []
def red8(regs, tmp, op="add"):
    for r in regs: A(f"  v_{op}_f32_dpp v{r}, v{r}, v{r} row_ror:8 row_mask:0xf bank_mask:0xf")
    for sw in ("32", "16"):
        for r, t in zip(regs, tmp): A(f"  v_mov_b32 v{t}, v{r}")
        A(f"  s_nop {max(0, 2 - len(regs))}")
        for r, t in zip(regs, tmp): A(f"  v_permlane{sw}_swap_b32 v{r}, v{t}")
        for r, t in zip(regs, tmp): A(f"  v_{op}_f32 v{r}, v{r}, v{t}")
def mpoll(name, loads, checks, pend, cnt="s42"):
    n = len(loads)
    for p in pend: A(f"  s_mov_b64 {p}, -1")
    A(f"  s_mov_b32 {cnt}, 0")
    if PIPE:
        for ld in loads: A(f"  {ld}")
    A(f"L{name}poll:")
    for i, ld in enumerate(loads):
        A(f"  s_mov_b64 exec, {pend[i]}")
        if not PIPE: A(f"  s_cbranch_execz L{name}s{i}")
        A(f"  {ld}")
        A(f"L{name}s{i}:")
    A("  s_mov_b64 exec, -1")
    A(f"  s_add_u32 {cnt}, {cnt}, 1")
    A(f"  s_waitcnt vmcnt({n if PIPE else 0})")
    checks()
    A(f"  s_or_b64 s[40:41], {pend[0]}, {pend[1]}")
    A(f"  s_or_b64 vcc, {pend[2]}, {pend[3]}")
    A(f"  s_or_b64 s[40:41], s[40:41], vcc")
    A(f"  s_cbranch_scc0 L{name}got")
    A(f"  s_cmp_lt_u32 {cnt}, {SPIN}")
    A(f"  s_cbranch_scc1 L{name}poll")
    A(f"L{name}got:")

DR = 32; XM, AC = 96, 128
if STAMPS: A("  s_memrealtime s[64:65]")
A("  s_load_dwordx16 s[4:19], s[0:1], 0")
A("  s_load_dwordx8 s[20:27], s[0:1], 64")
A("  s_load_dwordx4 s[28:31], s[0:1], 96")
A("  v_lshrrev_b32 v1, 6, v0")
A("  v_and_b32 v2, 63, v0")
A("  s_cmp_ge_u32 s2, 256")
A("  v_readfirstlane_b32 s34, v1")
A("  s_cbranch_scc1 Lend")
A("  s_and_b32 s32, s2, 7")
A("  s_lshr_b32 s33, s2, 3")
A("  s_cmp_ge_u32 s34, 2")
A("  s_cbranch_scc1 LA")
A("  s_lshl_b32 s37, s32, 10")
A("  s_lshr_b32 s38, s33, 2")
A("  s_lshl_b32 s38, s38, 7")
A("  s_add_u32 s37, s37, s38")
A("  s_and_b32 s39, s33, 3")
A("  s_lshl_b32 s38, s39, 20")
A("  s_add_u32 s37, s37, s38")
A("  s_lshl_b32 s39, s39, 8")
A(f"  s_mul_i32 s38, s32, {(512//W1G)*3584}")
A("  s_lshl_b32 s40, s33, 7")
A("  s_add_u32 s38, s38, s40")
A(f"  s_lshl_b32 s40, s32, {7 if W1G == 8 else 8}")
A(f"  s_mov_b32 s52, {28672 if W1G == 8 else 57344}")
A("  s_movk_i32 s55, 3584")
A("  s_cmp_eq_u32 s34, 0")
A("  s_cselect_b32 s37, s37, s38")
A("  s_cselect_b32 s39, s39, s40")
A("  s_cselect_b32 s52, 0x20000, s52")
A("  s_cselect_b32 s55, 0x2000, s55")
if W1G == 8: A("  s_cselect_b32 s53, 5, 4")
A("  v_lshrrev_b32 v4, 3, v2")
A("  v_and_b32 v3, 7, v2")
A("  v_mul_u32_u24 v5, s52, v4")
A("  v_lshlrev_b32 v6, 4, v3")
A("  v_add3_u32 v5, v5, v6, s37")
if W1G == 8:
    A("  v_lshlrev_b32 v6, s53, v4")
    A("  v_add_u32 v6, s39, v6")
else:
    A("  v_lshl_add_u32 v6, v4, 5, s39")
A("  s_cbranch_scc1 Lnpf")
A("  s_getpc_b64 s[40:41]")
A("Lpc:")
A("  v_lshlrev_b32 v7, 7, v2")
A("  v_min_u32 v7, Lend-Lpc, v7")
A("  global_load_dword v27, v7, s[40:41]")
A("  s_cmp_ge_u32 s33, 28")
A("  s_cbranch_scc1 LMskip")
if W1G == 4:
    A("  s_cmp_ge_u32 s32, 4")
    A("  s_cbranch_scc1 LMskip")
A("  s_cmp_eq_u32 s34, 0")
A("Lnpf:")
A("  s_setprio 3")
A("  s_waitcnt lgkmcnt(0)")
stamp(1)
A("  s_cselect_b64 s[40:41], s[10:11], s[16:17]")
A("  global_load_dwordx4 v[8:11], v6, s[4:5]")
if W1G == 8: A("  s_cbranch_scc0 Lgo")
A("  global_load_dwordx4 v[12:15], v6, s[4:5] offset:16")
A("Lgo:")
for i in range(16):
    A(f"  global_load_dwordx4 v[{DR+4*i}:{DR+4*i+3}], v5, s[40:41]{NT}")
    if i < 15: A(f"  v_add_u32 v5, s55, v5")
    if i == 7 and W1G == 8: A("  s_cbranch_scc0 LM")
if W1G == 4: A("  s_cbranch_scc0 LM")

B0K = int(opts.get("b0k", -1))
if B0K < 0: A("  s_barrier")
A("  s_load_dword s35, s[30:31], 0")
A("  s_getreg_b32 s39, hwreg(HW_REG_XCC_ID)")
stamp(2)
for c in range(8): A(f"  v_mov_b32 v{AC+c}, 0")
A("  s_and_b32 s39, s39, 7")
A("  s_lshl_b32 s37, s32, 13")
A(f"  s_add_u32 s37, s37, {QS}")
A("  s_lshl_b32 s38, s33, 8")
A("  s_add_u32 s38, s38, s37")
A("  v_lshrrev_b32 v5, 5, v2")
A("  v_lshlrev_b32 v5, 7, v5")
A("  v_lshl_add_u32 v5, v3, 4, v5")
A("  v_add_u32 v5, s38, v5")
A(f"  v_add_u32 v7, {QB-QS}, v5")
A("  v_lshlrev_b32 v6, 10, v4")
A("  v_lshl_add_u32 v6, v3, 4, v6")
A("  v_add_u32 v6, s37, v6")
A("  v_lshrrev_b32 v140, 4, v2")
A("  v_mul_u32_u24 v140, 320, v140")
A("  v_and_b32 v141, 15, v2")
A("  v_lshl_add_u32 v140, v141, 4, v140")
A("  s_lshl_b32 s37, s32, 17")
A("  s_lshl_b32 s38, s33, 12")
A("  s_add_u32 s37, s37, s38")
A(f"  s_add_u32 s37, s37, {C1}")
A("  v_lshl_add_u32 v141, v2, 4, s37")
A("  s_lshl_b32 s37, s33, 10")
A("  s_lshl_b32 s38, s32, 7")
A("  s_add_u32 s37, s37, s38")
A(f"  s_add_u32 s37, s37, {C2}")
A("  v_lshl_add_u32 v143, v2, 4, s37")
A("  v_lshlrev_b32 v142, 4, v3")
A(f"  v_add_u32 v142, {L_C}, v142")
A(f"  v_mov_b32 v144, {L_F}")
A("  s_mov_b32 s44, 0x07060503")
A("  s_mov_b32 s45, 0x07060502")
A("  s_mov_b32 s46, 0x07060501")
A("  s_mov_b32 s47, 0x04000c0c")
A("  s_mov_b32 s48, 0x0706000c")
A("  s_waitcnt vmcnt(16)")
def xmasks(n):
    for k in range(n):
        A(f"  v_and_b32 v{XM+4*k}, 0xffff, v{8+k}")
        A(f"  v_lshlrev_b32 v{XM+1+4*k}, 16, v{8+k}")
        A(f"  v_lshrrev_b32 v{XM+2+4*k}, 16, v{8+k}")
        A(f"  v_and_b32 v{XM+3+4*k}, 0xffff0000, v{8+k}")
def dots(n, extra, bar=-1):
    for i in range(n):
        A(f"  s_waitcnt vmcnt({n-1-i+extra})")
        if i == bar: A("  s_barrier")
        for c in range(4):
            A(f"  v_dot2c_f32_bf16 v{AC+2*c}, v{DR+4*i+c}, v{XM+2*i}")
            A(f"  v_dot2c_f32_bf16 v{AC+1+2*c}, v{DR+4*i+c}, v{XM+1+2*i}")
xmasks(8)
dots(16, 0, B0K)
stamp(4)
A("  s_waitcnt lgkmcnt(0)")
tag_compute()
A("  s_or_b32 s43, s36, s39")
for c in range(4): A(f"  v_permlane32_swap_b32 v{AC+c}, v{AC+4+c}")
for c in range(4): A(f"  v_add_f32 v{AC+c}, v{AC+c}, v{AC+4+c}")
for c in range(4): A(f"  v_add_f32_dpp v{AC+c}, v{AC+c}, v{AC+c} row_ror:8 row_mask:0xf bank_mask:0xf")
for c in range(4): A(f"  v_mov_b32 v{AC+4+c}, v{AC+c}")
for c in range(4): A(f"  v_permlane16_swap_b32 v{AC+c}, v{AC+4+c}")
for c in range(4): A(f"  v_add_f32 v{AC+c}, v{AC+c}, v{AC+4+c}")
for c in range(3): A(f"  v_perm_b32 v{AC+c}, v{AC+c}, v{AC+3}, s{44+c}")
A(f"  v_add3_u32 v{AC+3}, v{AC}, v{AC+1}, v{AC+2}")
A(f"  v_add_u32 v{AC+3}, s43, v{AC+3}")
A("  s_mov_b32 exec_lo, 0xff")
A("  s_mov_b32 exec_hi, 0xff")
A(f"  global_store_dwordx4 v5, v[{AC}:{AC+3}], s[30:31]")
LAZYB = "nolazy" not in opts
if not LAZYB: A(f"  global_store_dwordx4 v7, v[{AC}:{AC+3}], s[30:31] sc1")
A("  s_mov_b64 exec, -1")
stamp(5)
if BX: A("  s_barrier")
stamp(14)
PQ8 = [f"s[{4+2*i}:{5+2*i}]" for i in range(8)]
for p in PQ8: A(f"  s_mov_b64 {p}, -1")
A("  s_mov_b32 s42, 0")
SU = 64
BY = BX and "noby" not in opts
if BY:
    for gI in range(8):
        A(f"  global_load_dwordx4 v[{DR+gI*4}:{DR+gI*4+3}], v6, s[30:31] offset:{(gI>>1)*256+(gI&1)*128} sc1")
    A("  s_barrier")
    A("  s_branch LQiss")
A("LQpoll:")
A(f"  s_cmp_lt_u32 s42, {NPA}")
A("  s_cbranch_scc1 LQpa")
A(f"  v_xor_b32 v6, {QB^QS}, v6")
A("LQpa:")
for gI in range(8):
    ks, hf = gI >> 1, gI & 1
    r = DR + gI*4
    A(f"  s_mov_b64 exec, {PQ8[gI]}")
    A(f"  global_load_dwordx4 v[{r}:{r+3}], v6, s[30:31] offset:{ks*256+hf*128} sc1")
A("  s_mov_b64 exec, -1")
A("LQiss:")
A("  s_add_u32 s42, s42, 1")
stamp(3)
for gI in range(8):
    ks, hf = gI >> 1, gI & 1
    r = DR + gI*4
    A(f"  s_waitcnt vmcnt({7-gI})")
    A(f"  v_add3_u32 v{8+gI}, v{r}, v{r+1}, v{r+2}")
    A(f"  v_perm_b32 v{72+gI}, v{r}, v{r+1}, s47")
    A(f"  v_sub_u32 v{8+gI}, v{r+3}, v{8+gI}")
    A(f"  v_perm_b32 v{72+gI}, v{72+gI}, v{r+2}, s48")
    A(f"  v_xor_b32 v{8+gI}, s43, v{8+gI}")
    src = [r, r+1, r+2, 72+gI]
    if ks == 1:
        p = [r-8, r-7, r-6, 72+gI-2]
        for c in range(4): A(f"  v_add_f32 v{SU+4*hf+c}, v{p[c]}, v{src[c]}")
    elif ks >= 2:
        for c in range(4): A(f"  v_add_f32 v{SU+4*hf+c}, v{SU+4*hf+c}, v{src[c]}")
    A(f"  v_cmp_le_u32 {PQ8[gI]}, 8, v{8+gI}")
    if gI == 6:
        for c in range(2): A(f"  v_cvt_pk_bf16_f32 v{80+c}, v{SU+2*c}, v{SU+2*c+1}")
for c in range(2, 4): A(f"  v_cvt_pk_bf16_f32 v{80+c}, v{SU+2*c}, v{SU+2*c+1}")
A(f"  ds_write_b128 v140, v[80:83]")
A(f"  s_or_b64 s[40:41], {PQ8[0]}, {PQ8[1]}")
A(f"  s_or_b64 s[50:51], {PQ8[2]}, {PQ8[3]}")
A(f"  s_or_b64 s[52:53], {PQ8[4]}, {PQ8[5]}")
A(f"  s_or_b64 vcc, {PQ8[6]}, {PQ8[7]}")
A("  s_or_b64 s[40:41], s[40:41], s[50:51]")
A("  s_or_b64 vcc, vcc, s[52:53]")
A("  s_or_b64 s[40:41], s[40:41], vcc")
A("  s_cbranch_scc0 LQgot")
if LAZYB:
    A(f"  s_cmp_lg_u32 s42, {int(opts.get('lazyr', 2))}")
    A("  s_cbranch_scc1 LQnb")
    A("  s_mov_b32 exec_lo, 0xff")
    A("  s_mov_b32 exec_hi, 0xff")
    A(f"  global_store_dwordx4 v7, v[{AC}:{AC+3}], s[30:31] sc1")
    A("LQnb:")
A(f"  s_cmp_lt_u32 s42, {SPIN}")
A("  s_cbranch_scc1 LQpoll")
A("LQgot:")
A("  v_or3_b32 v8, v8, v9, v10")
A("  v_or3_b32 v11, v11, v12, v13")
A("  v_or3_b32 v8, v8, v14, v15")
A("  v_or_b32 v8, v8, v11")
A("  v_cmp_ne_u32 vcc, 0, v8")
A("  s_cmp_eq_u64 vcc, 0")
A("  s_cselect_b32 s57, 1, 0")
if SLOW: A("  s_mov_b32 s57, 0")
if LAZYB:
    A("  s_cmp_eq_u32 s57, 0")
    A("  s_cbranch_scc1 LQsb")
    A("LQsbr:")
A("  v_mov_b32 v4, s57")
A("  ds_write_b32 v144, v4")
if STAMPS: A("  s_mov_b32 s90, s42"); A("  s_mov_b32 s91, 0")
stamp(6)
A("  s_waitcnt lgkmcnt(0)")
A("  s_barrier")
base58()
A("  s_barrier")
stamp(7)
PQ = ["s[44:45]", "s[46:47]", "s[48:49]", "s[50:51]"]
def chkF():
    for i in range(4): A(f"  v_add3_u32 v{24+i}, v{8+4*i}, v{9+4*i}, s36")
    A("  v_add_f32 v28, v8, v12")
    A("  v_add_f32 v29, v9, v13")
    for i in range(4): A(f"  v_cmp_ne_u32 {PQ[i]}, v{24+i}, v{10+4*i}")
    A("  v_add_f32 v30, v16, v20")
    A("  v_add_f32 v31, v17, v21")
    A("  v_add_f32 v28, v28, v30")
    A("  v_add_f32 v29, v29, v31")
mpoll("F", [f"global_load_dwordx3 v[{8+4*i}:{10+4*i}], v141, s[58:59] offset:{1024*i} sc1" for i in range(4)], chkF, PQ)
stamp(8)
red8([28, 29], [36, 37])
A("  v_add3_u32 v30, v28, v29, s36")
A("  s_mov_b64 exec, 0xff")
A("  global_store_dwordx4 v143, v[28:31], s[30:31] sc1")
A("  ds_write_b96 v142, v[28:30]")
stamp(9)
stamp(11)
stamp_store()
A("  s_endpgm")

def gate_loads():
    A("  v_lshlrev_b32 v6, 4, v2")
    A("  global_load_dwordx4 v[16:19], v6, s[4:5]")
    A("  global_load_dwordx4 v[20:23], v6, s[24:25]")
    A("  s_lshl_b32 s37, s33, 5")
    A("  v_lshl_add_u32 v144, v3, 2, s37")
    A("  global_load_dword v145, v144, s[22:23]")
def gate_compute():
    for k in range(4):
        A(f"  v_lshlrev_b32 v{80+2*k}, 16, v{16+k}")
        A(f"  v_and_b32 v{81+2*k}, 0xffff0000, v{16+k}")
        A(f"  v_lshlrev_b32 v{88+2*k}, 16, v{20+k}")
        A(f"  v_and_b32 v{89+2*k}, 0xffff0000, v{20+k}")
    for k in range(8): A(f"  v_mul_f32 v{80+k}, v{80+k}, v{88+k}")
    for k in range(4): A(f"  v_cvt_pk_bf16_f32 v{88+k}, v{80+2*k}, v{81+2*k}")
    for k in range(4):
        A(f"  v_lshlrev_b32 v{80+2*k}, 16, v{88+k}")
        A(f"  v_and_b32 v{81+2*k}, 0xffff0000, v{88+k}")
    for k in range(4): A(f"  v_add_f32 v{80+2*k}, v{80+2*k}, v{81+2*k}")
    A("  v_add_f32 v80, v80, v82")
    A("  v_add_f32 v84, v84, v86")
    A("  v_add_f32 v80, v80, v84")
    for sw in ("32", "16"):
        A("  v_mov_b32 v81, v80")
        A("  s_nop 1")
        A(f"  v_permlane{sw}_swap_b32 v80, v81")
        A("  v_add_f32 v80, v80, v81")
    for r in (8, 4, 2, 1):
        A("  s_nop 1")
        A(f"  v_add_f32_dpp v80, v80, v80 row_ror:{r} row_mask:0xf bank_mask:0xf")
    A("  v_cvt_pk_bf16_f32 v80, v80, v80")
    A("  v_lshlrev_b32 v80, 16, v80")
    A(f"  v_mul_f32 v80, {f32(-math.log2(math.e))}, v80")
    A("  v_exp_f32 v80, v80")
    A("  s_nop 0")
    A("  v_add_f32 v80, 1.0, v80")
    A("  v_rcp_f32 v80, v80")
    A("  s_nop 0")
    A("  v_cvt_pk_bf16_f32 v80, v80, v80")
    A("  v_lshlrev_b32 v80, 16, v80")
    A("  v_sub_f32 v81, 1.0, v80")
    A("  v_cvt_pk_bf16_f32 v81, v81, v81")
    A("  v_lshlrev_b32 v81, 16, v81")
    A(f"  v_mov_b32 v82, {L_G}")
    A("  ds_write_b64 v82, v[80:81]")
A("LMskip:")
A("  s_waitcnt lgkmcnt(0)")
gate_loads()
A("  s_barrier")
A("  s_load_dword s35, s[30:31], 0")
A("  s_waitcnt vmcnt(0) lgkmcnt(0)")
tag_compute()
A("  s_mov_b32 s56, 0")
A("  s_branch LMgate")
A("LM:")
gate_loads()
A("  s_barrier")
A("  s_load_dword s35, s[30:31], 0")
stamp(2)
NM = 8 if W1G == 8 else 16
for c in range(8): A(f"  v_mov_b32 v{AC+c}, 0")
A("  s_lshl_b32 s37, s33, 12")
A(f"  s_add_u32 s37, s37, {HS}")
A("  s_lshl_b32 s38, s32, 9")
A("  s_add_u32 s38, s38, s37")
A("  v_lshl_add_u32 v5, v3, 3, v4")
A("  v_lshl_add_u32 v5, v5, 3, s38")
A(f"  s_waitcnt vmcnt({NM+3})")
xmasks(NM // 2)
dots(NM, 3)
stamp(3)
A("  s_waitcnt lgkmcnt(0)")
tag_compute()
for c in range(4): A(f"  v_permlane32_swap_b32 v{AC+c}, v{AC+4+c}")
for c in range(4): A(f"  v_add_f32 v{AC+c}, v{AC+c}, v{AC+4+c}")
A("  s_nop 0")
for c in range(2): A(f"  v_permlane16_swap_b32 v{AC+c}, v{AC+2+c}")
for c in range(2): A(f"  v_add_f32 v{AC+c}, v{AC+c}, v{AC+2+c}")
A("  s_nop 0")
A(f"  v_add_f32_dpp v{AC}, v{AC}, v{AC} row_ror:8 row_mask:0xf bank_mask:0x3")
A(f"  v_add_f32_dpp v{AC}, v{AC+1}, v{AC+1} row_ror:8 row_mask:0xf bank_mask:0xc")
A(f"  v_xor_b32 v{AC+1}, s36, v{AC}")
HE = "hlate" not in opts
if HE:
    A(f"  global_store_dwordx2 v5, v[{AC}:{AC+1}], s[30:31] sc1")
    A("  s_waitcnt vmcnt(1)")
else:
    A("  s_waitcnt vmcnt(0)")
    A("  s_mov_b32 s56, 1")
A("LMgate:")
gate_compute()
A("  s_min_u32 s49, s33, 27")
A("  s_lshl_b32 s37, s49, 12")
A("  s_lshl_b32 s38, s32, 6")
A("  s_add_u32 s38, s38, s37")
A(f"  s_add_u32 s38, s38, {HS}")
A(f"  v_and_b32 v146, {W1G-1}, v4")
A("  v_lshlrev_b32 v146, 9, v146")
A("  v_lshl_add_u32 v146, v3, 3, v146")
A("  v_add_u32 v146, s38, v146")
A("  s_lshl_b32 s37, s49, 7")
A("  s_lshl_b32 s38, s32, 4")
A("  s_add_u32 s37, s37, s38")
A("  v_lshl_add_u32 v147, v3, 1, s37")
A("  v_lshlrev_b32 v148, 1, v3")
A(f"  v_add_u32 v148, {L_H}, v148")
A("  s_lshl_b32 s37, s32, 17")
A("  s_lshl_b32 s38, s33, 12")
A("  s_add_u32 s37, s37, s38")
A(f"  s_add_u32 s37, s37, {BS}")
A("  v_lshl_add_u32 v8, v2, 4, s37")
A(f"  v_add_u32 v11, {C1-BS}, v8")
A(f"  v_mov_b32 v152, {L_HF}")
A("  v_mov_b32 v153, 0")
A("  ds_write_b32 v152, v153")
A("  global_load_ushort v149, v147, s[18:19]")
if BX: A("  s_barrier")
if not HE:
    A("  s_cmp_eq_u32 s56, 0")
    A("  s_cbranch_scc1 LMns")
    A(f"  global_store_dwordx2 v5, v[{AC}:{AC+1}], s[30:31] sc1")
    A("LMns:")
MPRE = "mpre" in opts
if BY and not MPRE: A("  s_barrier")
A("  global_load_dwordx2 v[150:151], v146, s[30:31] sc1")
for i in range(4): A(f"  global_load_dwordx4 v[{32+4*i}:{35+4*i}], v8, s[30:31] offset:{1024*i} sc1")
if BY and MPRE: A("  s_barrier")
A("  s_lshl_b32 s37, s33, 10")
A(f"  s_add_u32 s37, s37, {C2}")
A("  v_lshl_add_u32 v142, v2, 4, s37")
A("  v_lshlrev_b32 v143, 4, v3")
A(f"  v_add_u32 v143, {L_C}, v143")
A("  s_lshl_b32 s37, s32, 3")
A("  s_lshl_b64 s[46:47], 0xff, s37")
A("  v_lshlrev_b32 v84, 16, v145")
A("  v_and_b32 v85, 0xffff0000, v145")
A("  v_mul_f32 v84, v84, v81")
A("  v_mul_f32 v85, v85, v81")
A("  v_mov_b32 v12, 0")
A("  v_mov_b32 v13, 0")
A("  v_mov_b32 v14, 1")
A("  ds_write_b96 v143, v[12:14]")
A("  s_waitcnt lgkmcnt(0)")
stamp(4)
A("  s_barrier")
A("  s_waitcnt vmcnt(4)")
A("  s_mov_b32 s56, 0")
A("  v_xor_b32 v9, v150, v151")
A("  v_cmp_ne_u32 vcc, s36, v9")
A("  s_cbranch_vccnz LHno")
for i in range(4): A(f"  global_load_dwordx4 v[{48+4*i}:{51+4*i}], v11, s[30:31] offset:{1024*i} sc1")
A("  s_branch LHgot")
A("LHno:")
A("  s_mov_b32 s56, 1")
A("  s_mov_b32 s42, 0")
A("  global_load_dwordx2 v[150:151], v146, s[30:31] sc1")
for i in range(4): A(f"  global_load_dwordx4 v[{48+4*i}:{51+4*i}], v11, s[30:31] offset:{1024*i} sc1")
A("  s_barrier")
A("  s_waitcnt vmcnt(4)")
A("  s_branch LHchk")
A("LHpoll:")
A("  global_load_dwordx2 v[150:151], v146, s[30:31] sc1")
A("  s_add_u32 s42, s42, 1")
A("  s_waitcnt vmcnt(0)")
A("LHchk:")
A("  v_xor_b32 v9, v150, v151")
A("  v_cmp_ne_u32 vcc, s36, v9")
A("  s_cbranch_vccz LHgot")
A(f"  s_cmp_lt_u32 s42, {SPIN}")
A("  s_cbranch_scc1 LHpoll")
A("LHgot:")
A("  v_mov_b32 v8, v150")
A("  s_cmp_lt_u32 s33, 28")
A("  s_cselect_b32 s40, -1, 0")
if W1G == 8:
    red8([8], [9])
else:
    A("  v_add_f32_dpp v8, v8, v8 row_ror:8 row_mask:0xf bank_mask:0xf")
    A("  v_mov_b32 v9, v8")
    A("  s_nop 1")
    A("  v_permlane16_swap_b32 v8, v9")
    A("  v_add_f32 v8, v8, v9")
A("  v_cvt_pk_bf16_f32 v8, v8, v8")
A("  v_lshlrev_b32 v149, 16, v149")
A("  v_lshlrev_b32 v8, 16, v8")
A("  v_add_f32 v8, v8, v149")
A("  v_cvt_pk_bf16_f32 v8, v8, v8")
A("  v_lshlrev_b32 v8, 16, v8")
k1 = -2.0 * math.log2(math.e) * math.sqrt(2.0 / math.pi)
k2 = k1 * 0.044715
A(f"  s_mov_b32 s41, {f32(k2)}")
A(f"  v_mov_b32 v10, {f32(k1)}")
A("  v_mul_f32 v9, v8, v8")
A("  v_fma_f32 v9, v9, s41, v10")
A("  v_mul_f32 v9, v9, v8")
A("  v_exp_f32 v9, v9")
A("  s_nop 0")
A("  v_add_f32 v9, 1.0, v9")
A("  v_rcp_f32 v9, v9")
A("  s_nop 0")
A("  v_mul_f32 v8, v8, v9")
A("  s_nop 1")
A("  v_mov_b32_dpp v9, v8 quad_perm:[1,0,3,2] row_mask:0xf bank_mask:0xf")
A("  v_cvt_pk_bf16_f32 v8, v8, v9")
A("  v_and_b32 v8, s40, v8")
A("  s_mov_b64 exec, 0x55")
A("  ds_write_b32 v148, v8")
A("  s_mov_b64 exec, -1")
A("  v_mov_b32 v153, 1")
A("  ds_write_b32 v152, v153")
stamp(12)
if STAMPS: A("  s_mov_b32 s90, s56"); A("  s_mov_b32 s91, 0")
A("  s_cmp_lg_u32 s56, 0")
A("  s_cbranch_scc1 LHb2")
A("  s_barrier")
A("LHb2:")
A("  s_and_b32 s37, s33, 7")
A("  s_cmp_lg_u32 s37, s32")
A("  s_cbranch_scc1 LMend")
A("  s_mov_b64 s[44:45], -1")
A("  s_mov_b32 s42, 0")
if PIPE:
    A("  s_andn2_b64 exec, s[44:45], s[46:47]")
    A("  global_load_dwordx3 v[12:14], v142, s[30:31] sc1")
A("LGpoll:")
A("  s_andn2_b64 exec, s[44:45], s[46:47]")
if not PIPE: A("  s_cbranch_execz LGs0")
A("  global_load_dwordx3 v[12:14], v142, s[30:31] sc1")
A("LGs0:")
A("  s_and_b64 exec, s[44:45], s[46:47]")
A("  ds_read_b96 v[12:14], v143")
A("  s_mov_b64 exec, -1")
A("  s_add_u32 s42, s42, 1")
A(f"  s_waitcnt vmcnt({1 if PIPE else 0}) lgkmcnt(0)")
A("  v_add3_u32 v16, v12, v13, s36")
A("  v_mov_b32 v18, v12")
A("  v_mov_b32 v19, v13")
A("  v_cmp_ne_u32 s[44:45], v16, v14")
A("  s_cmp_lg_u64 s[44:45], 0")
A("  s_cbranch_scc0 LGgot")
A(f"  s_cmp_lt_u32 s42, {SPIN}")
A("  s_cbranch_scc1 LGpoll")
A("LGgot:")
stamp(10)
red8([18, 19], [10, 11])
A("  v_add_f32 v18, v18, v84")
A("  v_add_f32 v19, v19, v85")
A("  v_cvt_pk_bf16_f32 v8, v18, v19")
A("  s_mov_b64 exec, 0xff")
A("  global_store_dword v144, v8, s[26:27]")
A("  s_cmp_lg_u32 s2, 0")
A("  s_cbranch_scc1 LMend")
A("  s_mov_b64 exec, 1")
A("  v_mov_b32 v3, 0")
A("  v_mov_b32 v9, s36")
A("  global_store_dword v3, v9, s[30:31]")
A("LMend:")
stamp(11)
stamp_store()
A("  s_endpgm")

KR, VR, VP, WO, W2, QR, PS, SR, AO, AL, ONE, WP = 32, 64, 96, 128, 144, 152, 168, 184, 192, 200, 204, 208
for _ in range(int(opts.get("pad", 0))): A("  s_nop 0")
A("LA:")
A("  s_sub_u32 s43, s34, 2")
A("  s_lshl_b32 s54, s32, 24")
A("  s_lshl_b32 s38, s33, 15")
A("  s_add_u32 s54, s54, s38")
A("  s_lshl_b32 s38, s43, 13")
A("  s_add_u32 s54, s54, s38")
A(f"  s_add_u32 s54, s54, {61440*256}")
A("  v_and_b32 v3, 15, v2")
A("  v_lshrrev_b32 v4, 4, v2")
A("  v_lshlrev_b32 v9, 4, v3")
A("  s_lshl_b32 s37, s32, 19")
A("  s_lshl_b32 s38, s33, 14")
A("  s_add_u32 s37, s37, s38")
A("  s_lshl_b32 s38, s33, 16")
A("  s_lshl_b32 s39, s32, 13")
A("  s_add_u32 s38, s38, s39")
A("  s_lshl_b32 s39, s43, 8")
A("  s_cmp_lt_u32 s33, 28")
A("  s_cselect_b32 s38, s38, s37")
A("  v_lshl_add_u32 v10, v4, 12, v9")
A("  v_lshl_add_u32 v11, v4, 11, v9")
A("  v_add3_u32 v10, v10, s37, v1" if False else "  s_add_u32 s37, s37, s39")
A("  s_add_u32 s38, s38, s39")
A("  v_add_u32 v10, s37, v10")
A("  v_add_u32 v11, s38, v11")
A("  v_lshl_add_u32 v7, v4, 10, v9")
A("  v_add_u32 v7, s54, v7")
A("  v_add_u32 v8, 0x1000, v7")
A("  v_lshlrev_b32 v5, 8, v3")
A("  v_lshl_add_u32 v5, v4, 4, v5")
A("  v_add_u32 v5, s54, v5")
A("  v_add_u32 v6, 0x1000, v5")
A("  s_cmp_lt_u32 s33, 28")
A("  s_waitcnt lgkmcnt(0)")
A("  s_cselect_b64 s[20:21], s[20:21], s[12:13]")
A("  s_barrier")
stamp(1)
KTS = "kts" in opts
vk = [f"  global_load_dwordx4 v[{VR+(t*4+rr)*4}:{VR+(t*4+rr)*4+3}], v{7+t}, s[8:9] offset:{256*rr}{NT}" for t in range(2) for rr in range(4)]
vk += [f"  global_load_dwordx4 v[{KR+(t*4+s_)*4}:{KR+(t*4+s_)*4+3}], v{5+t}, s[6:7] offset:{64*s_}{NT}" for s_ in range(4) for t in range(2)]
_A = A
setup = []
A = setup.append
A("  s_load_dword s35, s[30:31], 0")
for i in range(16): A(f"  v_mov_b32 v{PS+i}, 0")
for i in range(4): A(f"  v_mov_b32 v{ONE+i}, 0x3f803f80")
A("  s_mov_b32 s44, 0x05040100")
A("  s_mov_b32 s45, 0x07060302")
for a in range(4):
    A(f"  s_mov_b32 s{46+2*a}, 0x{(0x000f000f << (4*a)):08x}")
    A(f"  s_mov_b32 s{47+2*a}, 0x{(0x000f000f << (4*a)):08x}")
A("  v_and_b32 v12, 3, v2")
A("  v_mul_u32_u24 v12, 320, v12")
A("  v_lshl_add_u32 v12, v4, 4, v12")
A("  s_mul_i32 s37, s43, 2304")
A(f"  s_add_u32 s37, s37, {L_O}")
A("  v_mul_u32_u24 v13, 544, v4")
A("  v_lshl_add_u32 v13, v3, 4, v13")
A("  v_add_u32 v13, s37, v13")
A("  s_lshl_b32 s37, s43, 3")
A(f"  s_add_u32 s37, s37, {L_ML}")
A("  v_lshl_add_u32 v14, v2, 5, s37")
A(f"  v_lshlrev_b32 v15, 3, v2")
A(f"  v_add_u32 v15, {L_JUNK}, v15")
A("  v_cmp_gt_u32 vcc, 4, v2")
A("  s_nop 1")
A("  v_cndmask_b32 v14, v15, v14, vcc")
A("  v_bfe_u32 v21, v2, 3, 2")
A("  v_lshrrev_b32 v22, 5, v2")
A("  s_lshl_b32 s37, s43, 1")
A("  v_add_u32 v22, s37, v22")
A("  v_and_b32 v23, 3, v2")
A("  v_mul_u32_u24 v15, 544, v23")
A("  v_lshl_add_u32 v15, v22, 5, v15")
A("  v_bfe_u32 v23, v2, 2, 1")
A("  v_lshl_add_u32 v15, v23, 4, v15")
A("  v_lshl_add_u32 v15, v21, 2, v15")
A(f"  v_add_u32 v15, {L_O}, v15")
A("  v_lshlrev_b32 v16, 5, v21")
A(f"  v_add_u32 v16, {L_ML}, v16")
A("  v_lshl_add_u32 v17, v21, 3, v22")
A("  v_lshlrev_b32 v17, 12, v17")
A("  v_and_b32 v23, 7, v2")
A("  v_lshl_add_u32 v17, v23, 4, v17")
A("  s_lshl_b32 s37, s32, 17")
A("  s_lshl_b32 s38, s33, 7")
A("  s_add_u32 s37, s37, s38")
A(f"  s_add_u32 s39, s37, {BS}")
A("  v_add_u32 v17, s39, v17")
A("  v_lshrrev_b32 v19, 1, v3")
A("  v_lshlrev_b32 v19, 12, v19")
A("  v_and_b32 v23, 1, v3")
A("  v_lshl_add_u32 v19, v23, 6, v19")
A("  v_lshl_add_u32 v19, v4, 4, v19")
A("  s_lshl_b32 s38, s43, 15")
A("  s_add_u32 s39, s37, s38")
A(f"  s_add_u32 s39, s39, {C1}")
A("  v_add_u32 v19, s39, v19")
A("  s_lshl_b32 s37, s32, 17")
A("  s_lshl_b32 s38, s33, 12")
A("  s_add_u32 s37, s37, s38")
A(f"  s_add_u32 s37, s37, {BS}")
A("  v_lshrrev_b32 v18, 1, v3")
A("  v_lshlrev_b32 v18, 7, v18")
A("  v_lshl_add_u32 v18, v23, 4, v18")
A("  v_lshl_add_u32 v18, v4, 5, v18")
A("  v_add_u32 v18, s37, v18")
A(f"  v_mov_b32 v20, {L_G}")
A("  v_lshlrev_b32 v9, 2, v4")
A(f"  v_add_u32 v9, {L_H}, v9")
c_sc = (128 ** -0.5) * math.log2(math.e)
A(f"  s_mov_b32 s54, {f32(c_sc)}")
BA = 232; AA = 240
for c in range(16): A(f"  v_mov_b32 v{BA+c}, 0")
A = _A
IL0 = int(opts.get("il0", 8))
HB = int(opts.get("hb", 0))
NV = 16 - HB
per = -(-len(setup) // (NV - IL0))
k = 0
for i, x in enumerate(vk[:NV]):
    A(x)
    if i >= IL0 - 1 and i < NV - 1:
        n = per
        while k + n < len(setup) and ("vcc" in setup[k+n] or "s_nop" in setup[k+n]): n += 1
        for y in setup[k:k+n]: A(y)
        k += n
stamp(2)
if BX: A("  s_barrier")
for y in setup[k:]: A(y)
if BY: A("  s_barrier")
for x in vk[NV:]: A(x)
for i in range(4): A(f"  global_load_dwordx4 v[{WO+4*i}:{WO+4*i+3}], v10, s[12:13] offset:{1024*i}{NT}")
for i in range(2): A(f"  global_load_dwordx4 v[{W2+4*i}:{W2+4*i+3}], v11, s[20:21] offset:{1024*i}{NT}")
stamp(3)
for i in range(4):
    A(f"  s_waitcnt vmcnt({20-2*i})")
    t, rp = i >> 1, (i & 1) * 2
    for j in range(8):
        a = VR + (t*4+rp)*4 + (j >> 1); b = VR + (t*4+rp+1)*4 + (j >> 1)
        A(f"  v_perm_b32 v{VP+4*j+i}, v{b}, v{a}, s{44 + (j & 1)}")
A("  s_waitcnt lgkmcnt(0)")
tag_compute()
stamp(13)
if STAMPS:
    A("  s_waitcnt vmcnt(6)")
    stamp(12)
A("  s_barrier")
for s in range(4):
    A(f"  ds_read_b128 v[{QR+4*s}:{QR+4*s+3}], v12 offset:{64*s}")
A("  ds_read_b96 v[28:30], v20")
for s in range(4):
    A(f"  s_waitcnt vmcnt({6 + ((3-s) if KTS else (6-2*s))}) lgkmcnt({0 if STAMPS else 4-s})")
    if s == 3: stamp(5)
    for t in range(2):
        r = KR + (t*4+s)*4
        cin = "0" if s == 0 else f"v[{SR+4*t}:{SR+4*t+3}]"
        A(f"  v_mfma_f32_16x16x32_bf16 v[{SR+4*t}:{SR+4*t+3}], v[{r}:{r+3}], v[{QR+4*s}:{QR+4*s+3}], {cin}")
A("  s_waitcnt lgkmcnt(0)")
A("  v_readfirstlane_b32 s57, v30")
base58()
A("  s_nop 0")
A(f"  v_max3_f32 v21, v{SR}, v{SR+1}, v{SR+2}")
A(f"  v_max3_f32 v22, v{SR+3}, v{SR+4}, v{SR+5}")
A(f"  v_max3_f32 v21, v21, v{SR+6}, v{SR+7}")
A(f"  v_max_f32 v21, v21, v22")
for sw in ("32", "16"):
    A("  v_mov_b32 v22, v21")
    A("  s_nop 1")
    A(f"  v_permlane{sw}_swap_b32 v21, v22")
    A("  v_max_f32 v21, v21, v22")
A("  v_mul_f32 v21, s54, v21")
for i in range(8):
    A(f"  v_fma_f32 v{SR+i}, v{SR+i}, s54, -v21")
    if i >= 1: A(f"  v_exp_f32 v{SR+i-1}, v{SR+i-1}")
A(f"  v_exp_f32 v{SR+7}, v{SR+7}")
for a in range(4):
    A(f"  s_mov_b64 exec, s[{46+2*a}:{47+2*a}]")
    for i in range(4):
        A(f"  v_cvt_pk_bf16_f32 v{PS+4*a+i}, v{SR+2*i}, v{SR+2*i+1}")
    A("  s_mov_b64 exec, -1")
    A("  s_nop 0")
    if a == 0: stamp(6)
    for e in range(2):
        j = 2*a + e
        cin = "0" if a == 0 else f"v[{AO+4*e}:{AO+4*e+3}]"
        A(f"  v_mfma_f32_16x16x32_bf16 v[{AO+4*e}:{AO+4*e+3}], v[{PS+4*a}:{PS+4*a+3}], v[{VP+4*j}:{VP+4*j+3}], {cin}")
    if a == 0:
        A(f"  v_mfma_f32_16x16x32_bf16 v[{AL}:{AL+3}], v[{ONE}:{ONE+3}], v[{PS}:{PS+3}], 0")
A(f"  ds_write2_b32 v14, v21, v{AL} offset0:0 offset1:1")
A("  s_nop 5")
A(f"  ds_write_b128 v13, v[{AO}:{AO+3}]")
A(f"  ds_write_b128 v13, v[{AO+4}:{AO+7}] offset:256")
A("  s_waitcnt lgkmcnt(0)")
stamp(7)
A("  s_barrier")
A(f"  ds_read_b128 v[{KR+8}:{KR+11}], v16")
A(f"  ds_read_b128 v[{KR+12}:{KR+15}], v16 offset:16")
for w in range(4):
    A(f"  ds_read2st64_b32 v[{KR+2*w}:{KR+2*w+1}], v15 offset0:{9*w} offset1:{9*w+1}")
lgkm(4)
m = [KR+8, KR+10, KR+12, KR+14]; l = [x+1 for x in m]
A(f"  v_max3_f32 v21, v{m[0]}, v{m[1]}, v{m[2]}")
A(f"  v_max_f32 v21, v21, v{m[3]}")
for w in range(4):
    A(f"  v_sub_f32 v{m[w]}, v{m[w]}, v21")
    if w >= 1: A(f"  v_exp_f32 v{m[w-1]}, v{m[w-1]}")
A(f"  v_exp_f32 v{m[3]}, v{m[3]}")
A(f"  v_mul_f32 v22, v{m[0]}, v{l[0]}")
for w in range(1, 4): A(f"  v_fmac_f32 v22, v{m[w]}, v{l[w]}")
A("  v_rcp_f32 v23, v22")
A("  v_log_f32 v22, v22")
lgkm(0)
A(f"  v_mul_f32 v{KR+16}, v{m[0]}, v{KR}")
A(f"  v_mul_f32 v{KR+17}, v{m[0]}, v{KR+1}")
for w in range(1, 4):
    A(f"  v_fmac_f32 v{KR+16}, v{m[w]}, v{KR+2*w}")
    A(f"  v_fmac_f32 v{KR+17}, v{m[w]}, v{KR+2*w+1}")
A(f"  v_add_f32 v{KR+18}, v21, v22")
A(f"  v_mul_f32 v{KR+16}, v{KR+16}, v23")
A(f"  v_mul_f32 v{KR+17}, v{KR+17}, v23")
A(f"  v_add_u32 v{KR+19}, s36, v{KR+18}")
A(f"  v_add3_u32 v{KR+19}, v{KR+16}, v{KR+17}, v{KR+19}")
store2(f"global_store_dwordx4 v17, v[{KR+16}:{KR+19}], s[58:59]")
stamp(8)
PB = VP
PA = ["s[46:47]", "s[48:49]", "s[50:51]", "s[52:53]"]
for i in range(4): A(f"  global_load_dwordx4 v[{PB+4*i}:{PB+4*i+3}], v18, s[58:59] offset:{1024*i} sc1")
A(f"  v_mov_b32 v25, {L_HF}")
A("  ds_read_b32 v25, v25")
A("  ds_read_b32 v24, v9")
A("  s_waitcnt vmcnt(5)")
for p in range(2):
    for c in range(4):
        a = WO + 8*p + c; b = a + 4
        A(f"  v_perm_b32 v{WP+8*p+2*c}, v{b}, v{a}, s44")
        A(f"  v_perm_b32 v{WP+8*p+2*c+1}, v{b}, v{a}, s45")
for c in range(4):
    a = W2 + c; b = a + 4
    A(f"  v_perm_b32 v{WP+16+2*c}, v{b}, v{a}, s44")
    A(f"  v_perm_b32 v{WP+16+2*c+1}, v{b}, v{a}, s45")
def redrq(b):
    for c in range(4): A(f"  v_permlane32_swap_b32 v{b+c}, v{b+4+c}")
    for c in range(4): A(f"  v_add_f32 v{b+c}, v{b+c}, v{b+4+c}")
    A("  s_nop 0")
    for c in range(2): A(f"  v_permlane16_swap_b32 v{b+c}, v{b+2+c}")
    for c in range(2): A(f"  v_add_f32 v{b+c}, v{b+c}, v{b+2+c}")
def bpart():
    for c in range(8): A(f"  v_dot2c_f32_bf16 v{BA+c}, v24, v{WP+16+c}")
    A("  s_nop 2")
    redrq(BA)
    A(f"  v_mul_f32 v{BA}, v{BA}, v29")
    A(f"  v_mul_f32 v{BA+1}, v{BA+1}, v29")
A("  s_waitcnt lgkmcnt(0)")
A("  v_readfirstlane_b32 s56, v25")
for p in PA: A(f"  s_mov_b64 {p}, -1")
A("  s_mov_b32 s42, 0")
A("  s_cmp_eq_u32 s56, 0")
A("  s_cbranch_scc1 LBnoh")
bpart()
A("LBnoh:")
stamp(9)
if not PIPEB: A("  s_branch LBchk")
A("LBpoll:")
for i in range(4):
    A(f"  s_mov_b64 exec, {PA[i]}")
    if not PIPEB: A(f"  s_cbranch_execz LBs{i}")
    A(f"  global_load_dwordx4 v[{PB+4*i}:{PB+4*i+3}], v18, s[58:59] offset:{1024*i} sc1")
    A(f"LBs{i}:")
A("  s_mov_b64 exec, -1")
A("  s_add_u32 s42, s42, 1")
A("  s_cmp_eq_u32 s56, 0")
A("  s_cbranch_scc1 Lhtry")
A("LBchk:")
A(f"  s_waitcnt vmcnt({4 if PIPEB else 0})")
ls = [PB+4*i+2 for i in range(4)]
for i in range(4): A(f"  v_add3_u32 v{PB+16+i}, v{PB+4*i}, v{PB+4*i+1}, v{PB+4*i+2}")
A(f"  v_max3_f32 v21, v{ls[0]}, v{ls[1]}, v{ls[2]}")
for i in range(4): A(f"  v_sub_u32 v{PB+16+i}, v{PB+4*i+3}, v{PB+16+i}")
A(f"  v_max_f32 v21, v21, v{ls[3]}")
for i in range(4): A(f"  v_cmp_ne_u32 {PA[i]}, s36, v{PB+16+i}")
A("  v_max_f32_dpp v21, v21, v21 row_ror:2 row_mask:0xf bank_mask:0xf")
A(f"  s_or_b64 s[40:41], {PA[0]}, {PA[1]}")
A(f"  s_or_b64 vcc, {PA[2]}, {PA[3]}")
A("  v_max_f32_dpp v21, v21, v21 row_ror:4 row_mask:0xf bank_mask:0xf")
A(f"  s_or_b64 s[40:41], s[40:41], vcc")
A(f"  s_cbranch_scc0 LBgot")
A(f"  s_cmp_lt_u32 s42, {SPIN}")
A(f"  s_cbranch_scc1 LBpoll")
A("LBgot:")
stamp(10)
A("  v_max_f32_dpp v21, v21, v21 row_ror:8 row_mask:0xf bank_mask:0xf")
lw = [PB+16+i for i in range(4)]
for i in range(4):
    A(f"  v_sub_f32 v{lw[i]}, v{ls[i]}, v21")
    if i >= 1: A(f"  v_exp_f32 v{lw[i-1]}, v{lw[i-1]}")
A(f"  v_exp_f32 v{lw[3]}, v{lw[3]}")
ls = lw
A(f"  v_mul_f32 v22, v{ls[0]}, v{PB}")
A(f"  v_mul_f32 v23, v{ls[0]}, v{PB+1}")
A(f"  v_add_f32 v21, v{ls[0]}, v{ls[1]}")
for i in range(1, 4):
    if i >= 2: A(f"  v_add_f32 v21, v21, v{ls[i]}")
    A(f"  v_fmac_f32 v22, v{ls[i]}, v{PB+4*i}")
    A(f"  v_fmac_f32 v23, v{ls[i]}, v{PB+4*i+1}")
for r in (2, 4, 8):
    for x in (21, 22, 23):
        A(f"  v_add_f32_dpp v{x}, v{x}, v{x} row_ror:{r} row_mask:0xf bank_mask:0xf")
A("  v_rcp_f32 v21, v21")
A("  s_nop 0")
A("  v_mul_f32 v22, v22, v21")
A("  v_mul_f32 v23, v23, v21")
A("  v_cvt_pk_bf16_f32 v22, v22, v23")
A("  s_nop 1")
for p in range(2):
    for c in range(8):
        A(f"  v_dot2c_f32_bf16_dpp v{AA+c}, v22, v{WP+8*p+c} quad_perm:[{p},{p},{p},{p}] row_mask:0xf bank_mask:0xf")
A("  s_nop 2")
redrq(AA)
A("  s_cmp_eq_u32 s56, 0")
A("  s_cbranch_scc1 Lhlate")
A("Lhback:")
A(f"  v_fma_f32 v24, v{AA}, v28, v{BA}")
A(f"  v_fma_f32 v25, v{AA+1}, v28, v{BA+1}")
A("  v_add3_u32 v26, v24, v25, s36")
store2("global_store_dwordx4 v19, v[24:27], s[58:59]")
stamp(11)
stamp_store()
A("  s_endpgm")
A("Lhtry:")
A(f"  v_mov_b32 v25, {L_HF}")
A("  ds_read_b32 v25, v25")
A("  ds_read_b32 v24, v9")
A("  s_waitcnt lgkmcnt(0)")
A("  v_readfirstlane_b32 s56, v25")
A("  s_cmp_eq_u32 s56, 0")
A("  s_cbranch_scc1 LBchk")
bpart()
A("  s_branch LBchk")
A("Lhlate:")
A("  s_mov_b32 s42, 0")
A("Lhl2:")
A(f"  v_mov_b32 v25, {L_HF}")
A("  ds_read_b32 v25, v25")
A("  ds_read_b32 v24, v9")
A("  s_add_u32 s42, s42, 1")
A("  s_waitcnt lgkmcnt(0)")
A("  v_readfirstlane_b32 s56, v25")
A(f"  s_cmp_ge_u32 s42, {SPIN}")
A("  s_cbranch_scc1 Lhl3")
A("  s_cmp_eq_u32 s56, 0")
A("  s_cbranch_scc1 Lhl2")
A("Lhl3:")
bpart()
A("  s_branch Lhback")
if LAZYB:
    A("LQsb:")
    A("  s_mov_b32 exec_lo, 0xff")
    A("  s_mov_b32 exec_hi, 0xff")
    A(f"  global_store_dwordx4 v7, v[{AC}:{AC+3}], s[30:31] sc1")
    A("  s_mov_b64 exec, -1")
    A("  s_branch LQsbr")
for n, ins in store2.tail:
    A(f"Lslow{n}:")
    A(f"  {ins} sc1")
    A(f"  s_branch Lsd{n}")
A("Lend:")
A("  s_endpgm")
L += footer(248, 100)
open(sys.argv[1], "w").write("\n".join(L) + "\n")
```

```python
import sys, struct, math
from common import *

opts = {}
for o in (sys.argv[2].split(",") if len(sys.argv) > 2 else []):
    k, _, v = o.partition("=")
    opts[k] = v
STAMPS = "stamps" in opts
NT = " nt"
SLOW = "slow" in opts
NPA = int(opts.get("npa", 6))
W1G = int(opts.get("w1g", 4))
BX = "nobx" not in opts
PIPE = "nopipe" not in opts
PIPEB = "pipeb" in opts

def f32(x): return "0x%08x" % struct.unpack("<I", struct.pack("<f", x))[0]

QS, HS, C2, BS, C1, QB, ST = 0x10000, 0x20000, 0x8000, 0x40000, 0x140000, 0x290000, 0x400000
SLOWOFF = 0x800000
L_Q = 0; L_H = 1280; L_G = 1296; L_F = 1304; L_ML = 1344; L_C = 1472; L_HF = 1308; L_JUNK = 1600; L_O = 2304
LDS_BYTES = L_O + 4 * 2304
SPIN = 0x100000

L = header(256, 384, LDS_BYTES); A = L.append
def stamp(k):
    if STAMPS: A(f"  s_memrealtime s[{64+2*k}:{65+2*k}]")
def stamp_store():
    if not STAMPS: return
    A("  s_waitcnt lgkmcnt(0)")
    A("  s_mul_i32 s60, s2, 6")
    A("  s_add_u32 s60, s60, s34")
    A("  s_lshl_b32 s60, s60, 7")
    A(f"  s_add_u32 s60, s60, {ST}")
    A("  v_mov_b32 v4, s60")
    A("  s_mov_b64 exec, 1")
    for k in range(16):
        A(f"  v_mov_b32 v6, s{64+2*k}")
        A(f"  v_mov_b32 v7, s{65+2*k}")
        A(f"  global_store_dwordx2 v4, v[6:7], s[30:31] offset:{8*k}")
        A("  s_nop 1")
def lgkm(n):
    A(f"  s_waitcnt lgkmcnt({0 if STAMPS else n})")
def tag_compute():
    A("  s_and_b32 s36, s35, 0xfffffff8")
    A("  s_add_u32 s36, s36, 0x9e3779b8")
def base58():
    A('  s_cmp_eq_u32 s57, 0')
    A(f'  s_cselect_b32 s58, {SLOWOFF}, 0')
    A('  s_add_u32 s58, s30, s58')
    A('  s_addc_u32 s59, s31, 0')
def store2(ins):
    n = store2.n; store2.n += 1
    A("  s_cmp_eq_u32 s57, 0")
    A(f"  s_cbranch_scc1 Lslow{n}")
    A(f"  {ins}{' nt' if 'stnt' in opts else ''}")
    A(f"Lsd{n}:")
    store2.tail.append((n, ins))
store2.n = 0; store2.tail = []
def red8(regs, tmp, op="add"):
    for r in regs: A(f"  v_{op}_f32_dpp v{r}, v{r}, v{r} row_ror:8 row_mask:0xf bank_mask:0xf")
    for sw in ("32", "16"):
        for r, t in zip(regs, tmp): A(f"  v_mov_b32 v{t}, v{r}")
        A(f"  s_nop {max(0, 2 - len(regs))}")
        for r, t in zip(regs, tmp): A(f"  v_permlane{sw}_swap_b32 v{r}, v{t}")
        for r, t in zip(regs, tmp): A(f"  v_{op}_f32 v{r}, v{r}, v{t}")
def mpoll(name, loads, checks, pend, cnt="s42"):
    n = len(loads)
    for p in pend: A(f"  s_mov_b64 {p}, -1")
    A(f"  s_mov_b32 {cnt}, 0")
    if PIPE:
        for ld in loads: A(f"  {ld}")
    A(f"L{name}poll:")
    for i, ld in enumerate(loads):
        A(f"  s_mov_b64 exec, {pend[i]}")
        if not PIPE: A(f"  s_cbranch_execz L{name}s{i}")
        A(f"  {ld}")
        A(f"L{name}s{i}:")
    A("  s_mov_b64 exec, -1")
    A(f"  s_add_u32 {cnt}, {cnt}, 1")
    A(f"  s_waitcnt vmcnt({n if PIPE else 0})")
    checks()
    A(f"  s_or_b64 s[40:41], {pend[0]}, {pend[1]}")
    A(f"  s_or_b64 vcc, {pend[2]}, {pend[3]}")
    A(f"  s_or_b64 s[40:41], s[40:41], vcc")
    A(f"  s_cbranch_scc0 L{name}got")
    A(f"  s_cmp_lt_u32 {cnt}, {SPIN}")
    A(f"  s_cbranch_scc1 L{name}poll")
    A(f"L{name}got:")

DR = 32; XM, AC = 96, 128
if STAMPS: A("  s_memrealtime s[64:65]")
A("  s_load_dwordx16 s[4:19], s[0:1], 0")
A("  s_load_dwordx8 s[20:27], s[0:1], 64")
A("  s_load_dwordx4 s[28:31], s[0:1], 96")
A("  v_lshrrev_b32 v1, 6, v0")
A("  v_and_b32 v2, 63, v0")
A("  s_cmp_ge_u32 s2, 256")
A("  v_readfirstlane_b32 s34, v1")
A("  s_cbranch_scc1 Lend")
A("  s_and_b32 s32, s2, 7")
A("  s_lshr_b32 s33, s2, 3")
A("  s_cmp_ge_u32 s34, 2")
A("  s_cbranch_scc1 LA")
A("  s_lshl_b32 s37, s32, 10")
A("  s_lshr_b32 s38, s33, 2")
A("  s_lshl_b32 s38, s38, 7")
A("  s_add_u32 s37, s37, s38")
A("  s_and_b32 s39, s33, 3")
A("  s_lshl_b32 s38, s39, 20")
A("  s_add_u32 s37, s37, s38")
A("  s_lshl_b32 s39, s39, 8")
A(f"  s_mul_i32 s38, s32, {(512//W1G)*3584}")
A("  s_lshl_b32 s40, s33, 7")
A("  s_add_u32 s38, s38, s40")
A(f"  s_lshl_b32 s40, s32, {7 if W1G == 8 else 8}")
A(f"  s_mov_b32 s52, {28672 if W1G == 8 else 57344}")
A("  s_movk_i32 s55, 3584")
A("  s_cmp_eq_u32 s34, 0")
A("  s_cselect_b32 s37, s37, s38")
A("  s_cselect_b32 s39, s39, s40")
A("  s_cselect_b32 s52, 0x20000, s52")
A("  s_cselect_b32 s55, 0x2000, s55")
if W1G == 8: A("  s_cselect_b32 s53, 5, 4")
A("  v_lshrrev_b32 v4, 3, v2")
A("  v_and_b32 v3, 7, v2")
A("  v_mul_u32_u24 v5, s52, v4")
A("  v_lshlrev_b32 v6, 4, v3")
A("  v_add3_u32 v5, v5, v6, s37")
if W1G == 8:
    A("  v_lshlrev_b32 v6, s53, v4")
    A("  v_add_u32 v6, s39, v6")
else:
    A("  v_lshl_add_u32 v6, v4, 5, s39")
A("  s_cbranch_scc1 Lnpf")
A("  s_getpc_b64 s[40:41]")
A("Lpc:")
A("  v_lshlrev_b32 v7, 7, v2")
A("  v_min_u32 v7, Lend-Lpc, v7")
A("  global_load_dword v27, v7, s[40:41]")
A("  s_cmp_ge_u32 s33, 28")
A("  s_cbranch_scc1 LMskip")
if W1G == 4:
    A("  s_cmp_ge_u32 s32, 4")
    A("  s_cbranch_scc1 LMskip")
A("  s_cmp_eq_u32 s34, 0")
A("Lnpf:")
A("  s_setprio 3")
A("  s_waitcnt lgkmcnt(0)")
stamp(1)
A("  s_cselect_b64 s[40:41], s[10:11], s[16:17]")
A("  global_load_dwordx4 v[8:11], v6, s[4:5]")
if W1G == 8: A("  s_cbranch_scc0 Lgo")
A("  global_load_dwordx4 v[12:15], v6, s[4:5] offset:16")
A("Lgo:")
for i in range(16):
    A(f"  global_load_dwordx4 v[{DR+4*i}:{DR+4*i+3}], v5, s[40:41]{NT}")
    if i < 15: A(f"  v_add_u32 v5, s55, v5")
    if i == 7 and W1G == 8: A("  s_cbranch_scc0 LM")
if W1G == 4: A("  s_cbranch_scc0 LM")

B0K = int(opts.get("b0k", -1))
if B0K < 0: A("  s_barrier")
A("  s_load_dword s35, s[30:31], 0")
A("  s_getreg_b32 s39, hwreg(HW_REG_XCC_ID)")
stamp(2)
for c in range(8): A(f"  v_mov_b32 v{AC+c}, 0")
A("  s_and_b32 s39, s39, 7")
A("  s_lshl_b32 s37, s32, 13")
A(f"  s_add_u32 s37, s37, {QS}")
A("  s_lshl_b32 s38, s33, 8")
A("  s_add_u32 s38, s38, s37")
A("  v_lshrrev_b32 v5, 5, v2")
A("  v_lshlrev_b32 v5, 7, v5")
A("  v_lshl_add_u32 v5, v3, 4, v5")
A("  v_add_u32 v5, s38, v5")
A(f"  v_add_u32 v7, {QB-QS}, v5")
A("  v_lshlrev_b32 v6, 10, v4")
A("  v_lshl_add_u32 v6, v3, 4, v6")
A("  v_add_u32 v6, s37, v6")
A("  v_lshrrev_b32 v140, 4, v2")
A("  v_mul_u32_u24 v140, 320, v140")
A("  v_and_b32 v141, 15, v2")
A("  v_lshl_add_u32 v140, v141, 4, v140")
A("  s_lshl_b32 s37, s32, 17")
A("  s_lshl_b32 s38, s33, 12")
A("  s_add_u32 s37, s37, s38")
A(f"  s_add_u32 s37, s37, {C1}")
A("  v_lshl_add_u32 v141, v2, 4, s37")
A("  s_lshl_b32 s37, s33, 10")
A("  s_lshl_b32 s38, s32, 7")
A("  s_add_u32 s37, s37, s38")
A(f"  s_add_u32 s37, s37, {C2}")
A("  v_lshl_add_u32 v143, v2, 4, s37")
A("  v_lshlrev_b32 v142, 4, v3")
A(f"  v_add_u32 v142, {L_C}, v142")
A(f"  v_mov_b32 v144, {L_F}")
A("  s_mov_b32 s44, 0x07060503")
A("  s_mov_b32 s45, 0x07060502")
A("  s_mov_b32 s46, 0x07060501")
A("  s_mov_b32 s47, 0x04000c0c")
A("  s_mov_b32 s48, 0x0706000c")
A("  s_waitcnt vmcnt(16)")
def xmasks(n):
    for k in range(n):
        A(f"  v_and_b32 v{XM+4*k}, 0xffff, v{8+k}")
        A(f"  v_lshlrev_b32 v{XM+1+4*k}, 16, v{8+k}")
        A(f"  v_lshrrev_b32 v{XM+2+4*k}, 16, v{8+k}")
        A(f"  v_and_b32 v{XM+3+4*k}, 0xffff0000, v{8+k}")
def dots(n, extra, bar=-1):
    for i in range(n):
        A(f"  s_waitcnt vmcnt({n-1-i+extra})")
        if i == bar: A("  s_barrier")
        for c in range(4):
            A(f"  v_dot2c_f32_bf16 v{AC+2*c}, v{DR+4*i+c}, v{XM+2*i}")
            A(f"  v_dot2c_f32_bf16 v{AC+1+2*c}, v{DR+4*i+c}, v{XM+1+2*i}")
xmasks(8)
dots(16, 0, B0K)
stamp(4)
A("  s_waitcnt lgkmcnt(0)")
tag_compute()
A("  s_or_b32 s43, s36, s39")
for c in range(4): A(f"  v_permlane32_swap_b32 v{AC+c}, v{AC+4+c}")
for c in range(4): A(f"  v_add_f32 v{AC+c}, v{AC+c}, v{AC+4+c}")
for c in range(4): A(f"  v_add_f32_dpp v{AC+c}, v{AC+c}, v{AC+c} row_ror:8 row_mask:0xf bank_mask:0xf")
for c in range(4): A(f"  v_mov_b32 v{AC+4+c}, v{AC+c}")
for c in range(4): A(f"  v_permlane16_swap_b32 v{AC+c}, v{AC+4+c}")
for c in range(4): A(f"  v_add_f32 v{AC+c}, v{AC+c}, v{AC+4+c}")
for c in range(3): A(f"  v_perm_b32 v{AC+c}, v{AC+c}, v{AC+3}, s{44+c}")
A(f"  v_add3_u32 v{AC+3}, v{AC}, v{AC+1}, v{AC+2}")
A(f"  v_add_u32 v{AC+3}, s43, v{AC+3}")
A("  s_mov_b32 exec_lo, 0xff")
A("  s_mov_b32 exec_hi, 0xff")
A(f"  global_store_dwordx4 v5, v[{AC}:{AC+3}], s[30:31]")
LAZYB = "nolazy" not in opts
if not LAZYB: A(f"  global_store_dwordx4 v7, v[{AC}:{AC+3}], s[30:31] sc1")
A("  s_mov_b64 exec, -1")
stamp(5)
if BX: A("  s_barrier")
stamp(14)
PQ8 = [f"s[{4+2*i}:{5+2*i}]" for i in range(8)]
for p in PQ8: A(f"  s_mov_b64 {p}, -1")
A("  s_mov_b32 s42, 0")
SU = 64
BY = BX and "noby" not in opts
if BY:
    for gI in range(8):
        A(f"  global_load_dwordx4 v[{DR+gI*4}:{DR+gI*4+3}], v6, s[30:31] offset:{(gI>>1)*256+(gI&1)*128} sc1")
    A("  s_barrier")
    A("  s_branch LQiss")
A("LQpoll:")
A(f"  s_cmp_lt_u32 s42, {NPA}")
A("  s_cbranch_scc1 LQpa")
A(f"  v_xor_b32 v6, {QB^QS}, v6")
A("LQpa:")
for gI in range(8):
    ks, hf = gI >> 1, gI & 1
    r = DR + gI*4
    A(f"  s_mov_b64 exec, {PQ8[gI]}")
    A(f"  global_load_dwordx4 v[{r}:{r+3}], v6, s[30:31] offset:{ks*256+hf*128} sc1")
A("  s_mov_b64 exec, -1")
A("LQiss:")
A("  s_add_u32 s42, s42, 1")
stamp(3)
for gI in range(8):
    ks, hf = gI >> 1, gI & 1
    r = DR + gI*4
    A(f"  s_waitcnt vmcnt({7-gI})")
    A(f"  v_add3_u32 v{8+gI}, v{r}, v{r+1}, v{r+2}")
    A(f"  v_perm_b32 v{72+gI}, v{r}, v{r+1}, s47")
    A(f"  v_sub_u32 v{8+gI}, v{r+3}, v{8+gI}")
    A(f"  v_perm_b32 v{72+gI}, v{72+gI}, v{r+2}, s48")
    A(f"  v_xor_b32 v{8+gI}, s43, v{8+gI}")
    src = [r, r+1, r+2, 72+gI]
    if ks == 1:
        p = [r-8, r-7, r-6, 72+gI-2]
        for c in range(4): A(f"  v_add_f32 v{SU+4*hf+c}, v{p[c]}, v{src[c]}")
    elif ks >= 2:
        for c in range(4): A(f"  v_add_f32 v{SU+4*hf+c}, v{SU+4*hf+c}, v{src[c]}")
    A(f"  v_cmp_le_u32 {PQ8[gI]}, 8, v{8+gI}")
    if gI == 6:
        for c in range(2): A(f"  v_cvt_pk_bf16_f32 v{80+c}, v{SU+2*c}, v{SU+2*c+1}")
for c in range(2, 4): A(f"  v_cvt_pk_bf16_f32 v{80+c}, v{SU+2*c}, v{SU+2*c+1}")
A(f"  ds_write_b128 v140, v[80:83]")
A(f"  s_or_b64 s[40:41], {PQ8[0]}, {PQ8[1]}")
A(f"  s_or_b64 s[50:51], {PQ8[2]}, {PQ8[3]}")
A(f"  s_or_b64 s[52:53], {PQ8[4]}, {PQ8[5]}")
A(f"  s_or_b64 vcc, {PQ8[6]}, {PQ8[7]}")
A("  s_or_b64 s[40:41], s[40:41], s[50:51]")
A("  s_or_b64 vcc, vcc, s[52:53]")
A("  s_or_b64 s[40:41], s[40:41], vcc")
A("  s_cbranch_scc0 LQgot")
if LAZYB:
    A(f"  s_cmp_lg_u32 s42, {int(opts.get('lazyr', 2))}")
    A("  s_cbranch_scc1 LQnb")
    A("  s_mov_b32 exec_lo, 0xff")
    A("  s_mov_b32 exec_hi, 0xff")
    A(f"  global_store_dwordx4 v7, v[{AC}:{AC+3}], s[30:31] sc1")
    A("LQnb:")
A(f"  s_cmp_lt_u32 s42, {SPIN}")
A("  s_cbranch_scc1 LQpoll")
A("LQgot:")
A("  v_or3_b32 v8, v8, v9, v10")
A("  v_or3_b32 v11, v11, v12, v13")
A("  v_or3_b32 v8, v8, v14, v15")
A("  v_or_b32 v8, v8, v11")
A("  v_cmp_ne_u32 vcc, 0, v8")
A("  s_cmp_eq_u64 vcc, 0")
A("  s_cselect_b32 s57, 1, 0")
if SLOW: A("  s_mov_b32 s57, 0")
if LAZYB:
    A("  s_cmp_eq_u32 s57, 0")
    A("  s_cbranch_scc1 LQsb")
    A("LQsbr:")
A("  v_mov_b32 v4, s57")
A("  ds_write_b32 v144, v4")
if STAMPS: A("  s_mov_b32 s90, s42"); A("  s_mov_b32 s91, 0")
stamp(6)
A("  s_waitcnt lgkmcnt(0)")
A("  s_barrier")
base58()
A("  s_barrier")
stamp(7)
if "nob3" not in opts: A("  s_barrier")
PQ = ["s[44:45]", "s[46:47]", "s[48:49]", "s[50:51]"]
def chkF():
    for i in range(4): A(f"  v_add3_u32 v{24+i}, v{8+4*i}, v{9+4*i}, s36")
    A("  v_add_f32 v28, v8, v12")
    A("  v_add_f32 v29, v9, v13")
    for i in range(4): A(f"  v_cmp_ne_u32 {PQ[i]}, v{24+i}, v{10+4*i}")
    A("  v_add_f32 v30, v16, v20")
    A("  v_add_f32 v31, v17, v21")
    A("  v_add_f32 v28, v28, v30")
    A("  v_add_f32 v29, v29, v31")
mpoll("F", [f"global_load_dwordx3 v[{8+4*i}:{10+4*i}], v141, s[58:59] offset:{1024*i} sc1" for i in range(4)], chkF, PQ)
stamp(8)
red8([28, 29], [36, 37])
A("  v_add3_u32 v30, v28, v29, s36")
A("  s_mov_b64 exec, 0xff")
A("  global_store_dwordx4 v143, v[28:31], s[30:31] sc1")
A("  ds_write_b96 v142, v[28:30]")
stamp(9)
stamp(11)
stamp_store()
A("  s_endpgm")

def gate_loads():
    A("  v_lshlrev_b32 v6, 4, v2")
    A("  global_load_dwordx4 v[16:19], v6, s[4:5]")
    A("  global_load_dwordx4 v[20:23], v6, s[24:25]")
    A("  s_lshl_b32 s37, s33, 5")
    A("  v_lshl_add_u32 v144, v3, 2, s37")
    A("  global_load_dword v145, v144, s[22:23]")
def gate_compute():
    for k in range(4):
        A(f"  v_lshlrev_b32 v{80+2*k}, 16, v{16+k}")
        A(f"  v_and_b32 v{81+2*k}, 0xffff0000, v{16+k}")
        A(f"  v_lshlrev_b32 v{88+2*k}, 16, v{20+k}")
        A(f"  v_and_b32 v{89+2*k}, 0xffff0000, v{20+k}")
    for k in range(8): A(f"  v_mul_f32 v{80+k}, v{80+k}, v{88+k}")
    for k in range(4): A(f"  v_cvt_pk_bf16_f32 v{88+k}, v{80+2*k}, v{81+2*k}")
    for k in range(4):
        A(f"  v_lshlrev_b32 v{80+2*k}, 16, v{88+k}")
        A(f"  v_and_b32 v{81+2*k}, 0xffff0000, v{88+k}")
    for k in range(4): A(f"  v_add_f32 v{80+2*k}, v{80+2*k}, v{81+2*k}")
    A("  v_add_f32 v80, v80, v82")
    A("  v_add_f32 v84, v84, v86")
    A("  v_add_f32 v80, v80, v84")
    for sw in ("32", "16"):
        A("  v_mov_b32 v81, v80")
        A("  s_nop 1")
        A(f"  v_permlane{sw}_swap_b32 v80, v81")
        A("  v_add_f32 v80, v80, v81")
    for r in (8, 4, 2, 1):
        A("  s_nop 1")
        A(f"  v_add_f32_dpp v80, v80, v80 row_ror:{r} row_mask:0xf bank_mask:0xf")
    A("  v_cvt_pk_bf16_f32 v80, v80, v80")
    A("  v_lshlrev_b32 v80, 16, v80")
    A(f"  v_mul_f32 v80, {f32(-math.log2(math.e))}, v80")
    A("  v_exp_f32 v80, v80")
    A("  s_nop 0")
    A("  v_add_f32 v80, 1.0, v80")
    A("  v_rcp_f32 v80, v80")
    A("  s_nop 0")
    A("  v_cvt_pk_bf16_f32 v80, v80, v80")
    A("  v_lshlrev_b32 v80, 16, v80")
    A("  v_sub_f32 v81, 1.0, v80")
    A("  v_cvt_pk_bf16_f32 v81, v81, v81")
    A("  v_lshlrev_b32 v81, 16, v81")
    A(f"  v_mov_b32 v82, {L_G}")
    A("  ds_write_b64 v82, v[80:81]")
A("LMskip:")
A("  s_waitcnt lgkmcnt(0)")
gate_loads()
A("  s_barrier")
A("  s_load_dword s35, s[30:31], 0")
A("  s_waitcnt vmcnt(0) lgkmcnt(0)")
tag_compute()
A("  s_mov_b32 s56, 0")
A("  s_branch LMgate")
A("LM:")
gate_loads()
A("  s_barrier")
A("  s_load_dword s35, s[30:31], 0")
stamp(2)
NM = 8 if W1G == 8 else 16
for c in range(8): A(f"  v_mov_b32 v{AC+c}, 0")
A("  s_lshl_b32 s37, s33, 12")
A(f"  s_add_u32 s37, s37, {HS}")
A("  s_lshl_b32 s38, s32, 9")
A("  s_add_u32 s38, s38, s37")
A("  v_lshl_add_u32 v5, v3, 3, v4")
A("  v_lshl_add_u32 v5, v5, 3, s38")
A(f"  s_waitcnt vmcnt({NM+3})")
xmasks(NM // 2)
dots(NM, 3)
stamp(3)
A("  s_waitcnt lgkmcnt(0)")
tag_compute()
for c in range(4): A(f"  v_permlane32_swap_b32 v{AC+c}, v{AC+4+c}")
for c in range(4): A(f"  v_add_f32 v{AC+c}, v{AC+c}, v{AC+4+c}")
A("  s_nop 0")
for c in range(2): A(f"  v_permlane16_swap_b32 v{AC+c}, v{AC+2+c}")
for c in range(2): A(f"  v_add_f32 v{AC+c}, v{AC+c}, v{AC+2+c}")
A("  s_nop 0")
A(f"  v_add_f32_dpp v{AC}, v{AC}, v{AC} row_ror:8 row_mask:0xf bank_mask:0x3")
A(f"  v_add_f32_dpp v{AC}, v{AC+1}, v{AC+1} row_ror:8 row_mask:0xf bank_mask:0xc")
A(f"  v_xor_b32 v{AC+1}, s36, v{AC}")
HE = "hlate" not in opts
if HE:
    A(f"  global_store_dwordx2 v5, v[{AC}:{AC+1}], s[30:31] sc1")
    A("  s_waitcnt vmcnt(1)")
else:
    A("  s_waitcnt vmcnt(0)")
    A("  s_mov_b32 s56, 1")
A("LMgate:")
gate_compute()
A("  s_min_u32 s49, s33, 27")
A("  s_lshl_b32 s37, s49, 12")
A("  s_lshl_b32 s38, s32, 6")
A("  s_add_u32 s38, s38, s37")
A(f"  s_add_u32 s38, s38, {HS}")
A(f"  v_and_b32 v146, {W1G-1}, v4")
A("  v_lshlrev_b32 v146, 9, v146")
A("  v_lshl_add_u32 v146, v3, 3, v146")
A("  v_add_u32 v146, s38, v146")
A("  s_lshl_b32 s37, s49, 7")
A("  s_lshl_b32 s38, s32, 4")
A("  s_add_u32 s37, s37, s38")
A("  v_lshl_add_u32 v147, v3, 1, s37")
A("  v_lshlrev_b32 v148, 1, v3")
A(f"  v_add_u32 v148, {L_H}, v148")
A("  s_lshl_b32 s37, s32, 17")
A("  s_lshl_b32 s38, s33, 12")
A("  s_add_u32 s37, s37, s38")
A(f"  s_add_u32 s37, s37, {BS}")
A("  v_lshl_add_u32 v8, v2, 4, s37")
A(f"  v_add_u32 v11, {C1-BS}, v8")
A(f"  v_mov_b32 v152, {L_HF}")
A("  v_mov_b32 v153, 0")
A("  ds_write_b32 v152, v153")
A("  global_load_ushort v149, v147, s[18:19]")
if BX: A("  s_barrier")
if not HE:
    A("  s_cmp_eq_u32 s56, 0")
    A("  s_cbranch_scc1 LMns")
    A(f"  global_store_dwordx2 v5, v[{AC}:{AC+1}], s[30:31] sc1")
    A("LMns:")
MPRE = "mpre" in opts
if BY and not MPRE: A("  s_barrier")
A("  global_load_dwordx2 v[150:151], v146, s[30:31] sc1")
for i in range(4): A(f"  global_load_dwordx4 v[{32+4*i}:{35+4*i}], v8, s[30:31] offset:{1024*i} sc1")
C1E = "c1late" not in opts
if C1E:
    for i in range(4): A(f"  global_load_dwordx4 v[{48+4*i}:{51+4*i}], v11, s[30:31] offset:{1024*i} sc1")
if BY and MPRE: A("  s_barrier")
A("  s_lshl_b32 s37, s33, 10")
A(f"  s_add_u32 s37, s37, {C2}")
A("  v_lshl_add_u32 v142, v2, 4, s37")
A("  v_lshlrev_b32 v143, 4, v3")
A(f"  v_add_u32 v143, {L_C}, v143")
A("  s_lshl_b32 s37, s32, 3")
A("  s_lshl_b64 s[46:47], 0xff, s37")
A("  v_lshlrev_b32 v84, 16, v145")
A("  v_and_b32 v85, 0xffff0000, v145")
A("  v_mul_f32 v84, v84, v81")
A("  v_mul_f32 v85, v85, v81")
A("  v_mov_b32 v12, 0")
A("  v_mov_b32 v13, 0")
A("  v_mov_b32 v14, 1")
A("  ds_write_b96 v143, v[12:14]")
A("  s_waitcnt lgkmcnt(0)")
stamp(4)
A("  s_barrier")
if not C1E:
    for i in range(4): A(f"  global_load_dwordx4 v[{48+4*i}:{51+4*i}], v11, s[30:31] offset:{1024*i} sc1")
A("  s_barrier")
A("  s_mov_b32 s42, 0")
A("  s_waitcnt vmcnt(8)")
A("  s_branch LHchk")
A("LHpoll:")
A("  global_load_dwordx2 v[150:151], v146, s[30:31] sc1")
A("  s_add_u32 s42, s42, 1")
A("  s_waitcnt vmcnt(0)")
A("LHchk:")
A("  v_xor_b32 v9, v150, v151")
A("  v_cmp_ne_u32 vcc, s36, v9")
A("  s_cbranch_vccz LHgot")
A(f"  s_cmp_lt_u32 s42, {SPIN}")
A("  s_cbranch_scc1 LHpoll")
A("LHgot:")
A("  v_mov_b32 v8, v150")
A("  s_cmp_lt_u32 s33, 28")
A("  s_cselect_b32 s40, -1, 0")
if W1G == 8:
    red8([8], [9])
else:
    A("  v_add_f32_dpp v8, v8, v8 row_ror:8 row_mask:0xf bank_mask:0xf")
    A("  v_mov_b32 v9, v8")
    A("  s_nop 1")
    A("  v_permlane16_swap_b32 v8, v9")
    A("  v_add_f32 v8, v8, v9")
A("  v_cvt_pk_bf16_f32 v8, v8, v8")
A("  v_lshlrev_b32 v149, 16, v149")
A("  v_lshlrev_b32 v8, 16, v8")
A("  v_add_f32 v8, v8, v149")
A("  v_cvt_pk_bf16_f32 v8, v8, v8")
A("  v_lshlrev_b32 v8, 16, v8")
k1 = -2.0 * math.log2(math.e) * math.sqrt(2.0 / math.pi)
k2 = k1 * 0.044715
A(f"  s_mov_b32 s41, {f32(k2)}")
A(f"  v_mov_b32 v10, {f32(k1)}")
A("  v_mul_f32 v9, v8, v8")
A("  v_fma_f32 v9, v9, s41, v10")
A("  v_mul_f32 v9, v9, v8")
A("  v_exp_f32 v9, v9")
A("  s_nop 0")
A("  v_add_f32 v9, 1.0, v9")
A("  v_rcp_f32 v9, v9")
A("  s_nop 0")
A("  v_mul_f32 v8, v8, v9")
A("  s_nop 1")
A("  v_mov_b32_dpp v9, v8 quad_perm:[1,0,3,2] row_mask:0xf bank_mask:0xf")
A("  v_cvt_pk_bf16_f32 v8, v8, v9")
A("  v_and_b32 v8, s40, v8")
A("  s_mov_b64 exec, 0x55")
A("  ds_write_b32 v148, v8")
A("  s_mov_b64 exec, -1")
A("  v_mov_b32 v153, 1")
A("  ds_write_b32 v152, v153")
stamp(12)
if STAMPS: A("  s_mov_b32 s90, s42"); A("  s_mov_b32 s91, 0")
B3 = "nob3" not in opts
A("  s_and_b32 s37, s33, 7")
A("  s_cmp_lg_u32 s37, s32")
if B3:
    A("  s_cbranch_scc1 LMnf")
    A("  global_load_dwordx3 v[12:14], v142, s[30:31] sc1")
    A("LMnf:")
    A("  s_barrier")
A("  s_cbranch_scc1 LMend")
A("  s_mov_b64 s[44:45], -1")
A("  s_mov_b32 s42, 0")
if PIPE:
    A("  s_andn2_b64 exec, s[44:45], s[46:47]")
    A("  global_load_dwordx3 v[12:14], v142, s[30:31] sc1")
A("LGpoll:")
A("  s_andn2_b64 exec, s[44:45], s[46:47]")
if not PIPE: A("  s_cbranch_execz LGs0")
A("  global_load_dwordx3 v[12:14], v142, s[30:31] sc1")
A("LGs0:")
A("  s_and_b64 exec, s[44:45], s[46:47]")
A("  ds_read_b96 v[12:14], v143")
A("  s_mov_b64 exec, -1")
A("  s_add_u32 s42, s42, 1")
A(f"  s_waitcnt vmcnt({1 if PIPE else 0}) lgkmcnt(0)")
A("  v_add3_u32 v16, v12, v13, s36")
A("  v_mov_b32 v18, v12")
A("  v_mov_b32 v19, v13")
A("  v_cmp_ne_u32 s[44:45], v16, v14")
A("  s_cmp_lg_u64 s[44:45], 0")
A("  s_cbranch_scc0 LGgot")
A(f"  s_cmp_lt_u32 s42, {SPIN}")
A("  s_cbranch_scc1 LGpoll")
A("LGgot:")
stamp(10)
red8([18, 19], [10, 11])
A("  v_add_f32 v18, v18, v84")
A("  v_add_f32 v19, v19, v85")
A("  v_cvt_pk_bf16_f32 v8, v18, v19")
A("  s_mov_b64 exec, 0xff")
A("  global_store_dword v144, v8, s[26:27]")
A("  s_cmp_lg_u32 s2, 0")
A("  s_cbranch_scc1 LMend")
A("  s_mov_b64 exec, 1")
A("  v_mov_b32 v3, 0")
A("  v_mov_b32 v9, s36")
A("  global_store_dword v3, v9, s[30:31]")
A("LMend:")
stamp(11)
stamp_store()
A("  s_endpgm")

KR, VR, VP, WO, W2, QR, PS, SR, AO, AL, ONE, WP = 32, 64, 96, 128, 144, 152, 168, 184, 192, 200, 204, 208
for _ in range(int(opts.get("pad", 0))): A("  s_nop 0")
A("LA:")
A("  s_sub_u32 s43, s34, 2")
A("  s_lshl_b32 s54, s32, 24")
A("  s_lshl_b32 s38, s33, 15")
A("  s_add_u32 s54, s54, s38")
A("  s_lshl_b32 s38, s43, 13")
A("  s_add_u32 s54, s54, s38")
A(f"  s_add_u32 s54, s54, {61440*256}")
A("  v_and_b32 v3, 15, v2")
A("  v_lshrrev_b32 v4, 4, v2")
A("  v_lshlrev_b32 v9, 4, v3")
A("  s_lshl_b32 s37, s32, 19")
A("  s_lshl_b32 s38, s33, 14")
A("  s_add_u32 s37, s37, s38")
A("  s_lshl_b32 s38, s33, 16")
A("  s_lshl_b32 s39, s32, 13")
A("  s_add_u32 s38, s38, s39")
A("  s_lshl_b32 s39, s43, 8")
A("  s_cmp_lt_u32 s33, 28")
A("  s_cselect_b32 s38, s38, s37")
A("  v_lshl_add_u32 v10, v4, 12, v9")
A("  v_lshl_add_u32 v11, v4, 11, v9")
A("  v_add3_u32 v10, v10, s37, v1" if False else "  s_add_u32 s37, s37, s39")
A("  s_add_u32 s38, s38, s39")
A("  v_add_u32 v10, s37, v10")
A("  v_add_u32 v11, s38, v11")
A("  v_lshl_add_u32 v7, v4, 10, v9")
A("  v_add_u32 v7, s54, v7")
A("  v_add_u32 v8, 0x1000, v7")
A("  v_lshlrev_b32 v5, 8, v3")
A("  v_lshl_add_u32 v5, v4, 4, v5")
A("  v_add_u32 v5, s54, v5")
A("  v_add_u32 v6, 0x1000, v5")
A("  s_cmp_lt_u32 s33, 28")
A("  s_waitcnt lgkmcnt(0)")
A("  s_cselect_b64 s[20:21], s[20:21], s[12:13]")
A("  s_barrier")
stamp(1)
KTS = "kts" in opts
vk = [f"  global_load_dwordx4 v[{VR+(t*4+rr)*4}:{VR+(t*4+rr)*4+3}], v{7+t}, s[8:9] offset:{256*rr}{NT}" for t in range(2) for rr in range(4)]
vk += [f"  global_load_dwordx4 v[{KR+(t*4+s_)*4}:{KR+(t*4+s_)*4+3}], v{5+t}, s[6:7] offset:{64*s_}{NT}" for s_ in range(4) for t in range(2)]
_A = A
setup = []
A = setup.append
A("  s_load_dword s35, s[30:31], 0")
for i in range(16): A(f"  v_mov_b32 v{PS+i}, 0")
for i in range(4): A(f"  v_mov_b32 v{ONE+i}, 0x3f803f80")
A("  s_mov_b32 s44, 0x05040100")
A("  s_mov_b32 s45, 0x07060302")
for a in range(4):
    A(f"  s_mov_b32 s{46+2*a}, 0x{(0x000f000f << (4*a)):08x}")
    A(f"  s_mov_b32 s{47+2*a}, 0x{(0x000f000f << (4*a)):08x}")
A("  v_and_b32 v12, 3, v2")
A("  v_mul_u32_u24 v12, 320, v12")
A("  v_lshl_add_u32 v12, v4, 4, v12")
A("  s_mul_i32 s37, s43, 2304")
A(f"  s_add_u32 s37, s37, {L_O}")
A("  v_mul_u32_u24 v13, 544, v4")
A("  v_lshl_add_u32 v13, v3, 4, v13")
A("  v_add_u32 v13, s37, v13")
A("  s_lshl_b32 s37, s43, 3")
A(f"  s_add_u32 s37, s37, {L_ML}")
A("  v_lshl_add_u32 v14, v2, 5, s37")
A(f"  v_lshlrev_b32 v15, 3, v2")
A(f"  v_add_u32 v15, {L_JUNK}, v15")
A("  v_cmp_gt_u32 vcc, 4, v2")
A("  s_nop 1")
A("  v_cndmask_b32 v14, v15, v14, vcc")
A("  v_bfe_u32 v21, v2, 3, 2")
A("  v_lshrrev_b32 v22, 5, v2")
A("  s_lshl_b32 s37, s43, 1")
A("  v_add_u32 v22, s37, v22")
A("  v_and_b32 v23, 3, v2")
A("  v_mul_u32_u24 v15, 544, v23")
A("  v_lshl_add_u32 v15, v22, 5, v15")
A("  v_bfe_u32 v23, v2, 2, 1")
A("  v_lshl_add_u32 v15, v23, 4, v15")
A("  v_lshl_add_u32 v15, v21, 2, v15")
A(f"  v_add_u32 v15, {L_O}, v15")
A("  v_lshlrev_b32 v16, 5, v21")
A(f"  v_add_u32 v16, {L_ML}, v16")
A("  v_lshl_add_u32 v17, v21, 3, v22")
A("  v_lshlrev_b32 v17, 12, v17")
A("  v_and_b32 v23, 7, v2")
A("  v_lshl_add_u32 v17, v23, 4, v17")
A("  s_lshl_b32 s37, s32, 17")
A("  s_lshl_b32 s38, s33, 7")
A("  s_add_u32 s37, s37, s38")
A(f"  s_add_u32 s39, s37, {BS}")
A("  v_add_u32 v17, s39, v17")
A("  v_lshrrev_b32 v19, 1, v3")
A("  v_lshlrev_b32 v19, 12, v19")
A("  v_and_b32 v23, 1, v3")
A("  v_lshl_add_u32 v19, v23, 6, v19")
A("  v_lshl_add_u32 v19, v4, 4, v19")
A("  s_lshl_b32 s38, s43, 15")
A("  s_add_u32 s39, s37, s38")
A(f"  s_add_u32 s39, s39, {C1}")
A("  v_add_u32 v19, s39, v19")
A("  s_lshl_b32 s37, s32, 17")
A("  s_lshl_b32 s38, s33, 12")
A("  s_add_u32 s37, s37, s38")
A(f"  s_add_u32 s37, s37, {BS}")
A("  v_lshrrev_b32 v18, 1, v3")
A("  v_lshlrev_b32 v18, 7, v18")
A("  v_lshl_add_u32 v18, v23, 4, v18")
A("  v_lshl_add_u32 v18, v4, 5, v18")
A("  v_add_u32 v18, s37, v18")
A(f"  v_mov_b32 v20, {L_G}")
A("  v_lshlrev_b32 v9, 2, v4")
A(f"  v_add_u32 v9, {L_H}, v9")
c_sc = (128 ** -0.5) * math.log2(math.e)
A(f"  s_mov_b32 s54, {f32(c_sc)}")
BA = 232; AA = 240
for c in range(16): A(f"  v_mov_b32 v{BA+c}, 0")
A = _A
IL0 = int(opts.get("il0", 6))
HB = int(opts.get("hb", 0))
NV = 16 - HB
per = -(-len(setup) // (NV - IL0))
k = 0
for i, x in enumerate(vk[:NV]):
    A(x)
    if i >= IL0 - 1 and i < NV - 1:
        n = per
        while k + n < len(setup) and ("vcc" in setup[k+n] or "s_nop" in setup[k+n]): n += 1
        for y in setup[k:k+n]: A(y)
        k += n
stamp(2)
if BX: A("  s_barrier")
for y in setup[k:]: A(y)
if BY: A("  s_barrier")
for x in vk[NV:]: A(x)
for i in range(4): A(f"  global_load_dwordx4 v[{WO+4*i}:{WO+4*i+3}], v10, s[12:13] offset:{1024*i}{NT}")
for i in range(2): A(f"  global_load_dwordx4 v[{W2+4*i}:{W2+4*i+3}], v11, s[20:21] offset:{1024*i}{NT}")
stamp(3)
for i in range(4):
    A(f"  s_waitcnt vmcnt({20-2*i})")
    t, rp = i >> 1, (i & 1) * 2
    for j in range(8):
        a = VR + (t*4+rp)*4 + (j >> 1); b = VR + (t*4+rp+1)*4 + (j >> 1)
        A(f"  v_perm_b32 v{VP+4*j+i}, v{b}, v{a}, s{44 + (j & 1)}")
A("  s_waitcnt lgkmcnt(0)")
tag_compute()
stamp(13)
if STAMPS:
    A("  s_waitcnt vmcnt(6)")
    stamp(12)
A("  s_barrier")
for s in range(4):
    A(f"  ds_read_b128 v[{QR+4*s}:{QR+4*s+3}], v12 offset:{64*s}")
A("  ds_read_b96 v[28:30], v20")
for s in range(4):
    A(f"  s_waitcnt vmcnt({6 + ((3-s) if KTS else (6-2*s))}) lgkmcnt({0 if STAMPS else 4-s})")
    if s == 3: stamp(5)
    for t in range(2):
        r = KR + (t*4+s)*4
        cin = "0" if s == 0 else f"v[{SR+4*t}:{SR+4*t+3}]"
        A(f"  v_mfma_f32_16x16x32_bf16 v[{SR+4*t}:{SR+4*t+3}], v[{r}:{r+3}], v[{QR+4*s}:{QR+4*s+3}], {cin}")
A("  s_waitcnt lgkmcnt(0)")
A("  v_readfirstlane_b32 s57, v30")
base58()
A("  s_nop 0")
A(f"  v_max3_f32 v21, v{SR}, v{SR+1}, v{SR+2}")
A(f"  v_max3_f32 v22, v{SR+3}, v{SR+4}, v{SR+5}")
A(f"  v_max3_f32 v21, v21, v{SR+6}, v{SR+7}")
A(f"  v_max_f32 v21, v21, v22")
for sw in ("32", "16"):
    A("  v_mov_b32 v22, v21")
    A("  s_nop 1")
    A(f"  v_permlane{sw}_swap_b32 v21, v22")
    A("  v_max_f32 v21, v21, v22")
A("  v_mul_f32 v21, s54, v21")
for i in range(8):
    A(f"  v_fma_f32 v{SR+i}, v{SR+i}, s54, -v21")
    if i >= 1: A(f"  v_exp_f32 v{SR+i-1}, v{SR+i-1}")
A(f"  v_exp_f32 v{SR+7}, v{SR+7}")
for a in range(4):
    A(f"  s_mov_b64 exec, s[{46+2*a}:{47+2*a}]")
    for i in range(4):
        A(f"  v_cvt_pk_bf16_f32 v{PS+4*a+i}, v{SR+2*i}, v{SR+2*i+1}")
    A("  s_mov_b64 exec, -1")
    A("  s_nop 0")
    if a == 0: stamp(6)
    for e in range(2):
        j = 2*a + e
        cin = "0" if a == 0 else f"v[{AO+4*e}:{AO+4*e+3}]"
        A(f"  v_mfma_f32_16x16x32_bf16 v[{AO+4*e}:{AO+4*e+3}], v[{PS+4*a}:{PS+4*a+3}], v[{VP+4*j}:{VP+4*j+3}], {cin}")
    if a == 0:
        A(f"  v_mfma_f32_16x16x32_bf16 v[{AL}:{AL+3}], v[{ONE}:{ONE+3}], v[{PS}:{PS+3}], 0")
A(f"  ds_write2_b32 v14, v21, v{AL} offset0:0 offset1:1")
A("  s_nop 5")
A(f"  ds_write_b128 v13, v[{AO}:{AO+3}]")
A(f"  ds_write_b128 v13, v[{AO+4}:{AO+7}] offset:256")
A("  s_waitcnt lgkmcnt(0)")
stamp(7)
A("  s_barrier")
A(f"  ds_read_b128 v[{KR+8}:{KR+11}], v16")
A(f"  ds_read_b128 v[{KR+12}:{KR+15}], v16 offset:16")
for w in range(4):
    A(f"  ds_read2st64_b32 v[{KR+2*w}:{KR+2*w+1}], v15 offset0:{9*w} offset1:{9*w+1}")
lgkm(4)
m = [KR+8, KR+10, KR+12, KR+14]; l = [x+1 for x in m]
A(f"  v_max3_f32 v21, v{m[0]}, v{m[1]}, v{m[2]}")
A(f"  v_max_f32 v21, v21, v{m[3]}")
for w in range(4):
    A(f"  v_sub_f32 v{m[w]}, v{m[w]}, v21")
    if w >= 1: A(f"  v_exp_f32 v{m[w-1]}, v{m[w-1]}")
A(f"  v_exp_f32 v{m[3]}, v{m[3]}")
A(f"  v_mul_f32 v22, v{m[0]}, v{l[0]}")
for w in range(1, 4): A(f"  v_fmac_f32 v22, v{m[w]}, v{l[w]}")
A("  v_rcp_f32 v23, v22")
A("  v_log_f32 v22, v22")
lgkm(0)
A(f"  v_mul_f32 v{KR+16}, v{m[0]}, v{KR}")
A(f"  v_mul_f32 v{KR+17}, v{m[0]}, v{KR+1}")
for w in range(1, 4):
    A(f"  v_fmac_f32 v{KR+16}, v{m[w]}, v{KR+2*w}")
    A(f"  v_fmac_f32 v{KR+17}, v{m[w]}, v{KR+2*w+1}")
A(f"  v_add_f32 v{KR+18}, v21, v22")
A(f"  v_mul_f32 v{KR+16}, v{KR+16}, v23")
A(f"  v_mul_f32 v{KR+17}, v{KR+17}, v23")
A(f"  v_add_u32 v{KR+19}, s36, v{KR+18}")
A(f"  v_add3_u32 v{KR+19}, v{KR+16}, v{KR+17}, v{KR+19}")
store2(f"global_store_dwordx4 v17, v[{KR+16}:{KR+19}], s[58:59]")
stamp(8)
PB = VP
PA = ["s[46:47]", "s[48:49]", "s[50:51]", "s[52:53]"]
for i in range(4): A(f"  global_load_dwordx4 v[{PB+4*i}:{PB+4*i+3}], v18, s[58:59] offset:{1024*i} sc1")
A(f"  v_mov_b32 v25, {L_HF}")
A("  ds_read_b32 v25, v25")
A("  ds_read_b32 v24, v9")
A("  s_waitcnt vmcnt(5)")
for p in range(2):
    for c in range(4):
        a = WO + 8*p + c; b = a + 4
        A(f"  v_perm_b32 v{WP+8*p+2*c}, v{b}, v{a}, s44")
        A(f"  v_perm_b32 v{WP+8*p+2*c+1}, v{b}, v{a}, s45")
for c in range(4):
    a = W2 + c; b = a + 4
    A(f"  v_perm_b32 v{WP+16+2*c}, v{b}, v{a}, s44")
    A(f"  v_perm_b32 v{WP+16+2*c+1}, v{b}, v{a}, s45")
def redrq(b):
    for c in range(4): A(f"  v_permlane32_swap_b32 v{b+c}, v{b+4+c}")
    for c in range(4): A(f"  v_add_f32 v{b+c}, v{b+c}, v{b+4+c}")
    A("  s_nop 0")
    for c in range(2): A(f"  v_permlane16_swap_b32 v{b+c}, v{b+2+c}")
    for c in range(2): A(f"  v_add_f32 v{b+c}, v{b+c}, v{b+2+c}")
def bpart():
    for c in range(8): A(f"  v_dot2c_f32_bf16 v{BA+c}, v24, v{WP+16+c}")
    A("  s_nop 2")
    redrq(BA)
    A(f"  v_mul_f32 v{BA}, v{BA}, v29")
    A(f"  v_mul_f32 v{BA+1}, v{BA+1}, v29")
A("  s_waitcnt lgkmcnt(0)")
A("  v_readfirstlane_b32 s56, v25")
for p in PA: A(f"  s_mov_b64 {p}, -1")
A("  s_mov_b32 s42, 0")
A("  s_cmp_eq_u32 s56, 0")
A("  s_cbranch_scc1 LBnoh")
bpart()
A("LBnoh:")
stamp(9)
if not PIPEB: A("  s_branch LBchk")
A("LBpoll:")
for i in range(4):
    A(f"  s_mov_b64 exec, {PA[i]}")
    if not PIPEB: A(f"  s_cbranch_execz LBs{i}")
    A(f"  global_load_dwordx4 v[{PB+4*i}:{PB+4*i+3}], v18, s[58:59] offset:{1024*i} sc1")
    A(f"LBs{i}:")
A("  s_mov_b64 exec, -1")
A("  s_add_u32 s42, s42, 1")
A("  s_cmp_eq_u32 s56, 0")
A("  s_cbranch_scc1 Lhtry")
A("LBchk:")
A(f"  s_waitcnt vmcnt({4 if PIPEB else 0})")
ls = [PB+4*i+2 for i in range(4)]
for i in range(4): A(f"  v_add3_u32 v{PB+16+i}, v{PB+4*i}, v{PB+4*i+1}, v{PB+4*i+2}")
A(f"  v_max3_f32 v21, v{ls[0]}, v{ls[1]}, v{ls[2]}")
for i in range(4): A(f"  v_sub_u32 v{PB+16+i}, v{PB+4*i+3}, v{PB+16+i}")
A(f"  v_max_f32 v21, v21, v{ls[3]}")
for i in range(4): A(f"  v_cmp_ne_u32 {PA[i]}, s36, v{PB+16+i}")
A("  v_max_f32_dpp v21, v21, v21 row_ror:2 row_mask:0xf bank_mask:0xf")
A(f"  s_or_b64 s[40:41], {PA[0]}, {PA[1]}")
A(f"  s_or_b64 vcc, {PA[2]}, {PA[3]}")
A("  v_max_f32_dpp v21, v21, v21 row_ror:4 row_mask:0xf bank_mask:0xf")
A(f"  s_or_b64 s[40:41], s[40:41], vcc")
A(f"  s_cbranch_scc0 LBgot")
A(f"  s_cmp_lt_u32 s42, {SPIN}")
A(f"  s_cbranch_scc1 LBpoll")
A("LBgot:")
stamp(10)
A("  v_max_f32_dpp v21, v21, v21 row_ror:8 row_mask:0xf bank_mask:0xf")
lw = [PB+16+i for i in range(4)]
for i in range(4):
    A(f"  v_sub_f32 v{lw[i]}, v{ls[i]}, v21")
    if i >= 1: A(f"  v_exp_f32 v{lw[i-1]}, v{lw[i-1]}")
A(f"  v_exp_f32 v{lw[3]}, v{lw[3]}")
ls = lw
A(f"  v_mul_f32 v22, v{ls[0]}, v{PB}")
A(f"  v_mul_f32 v23, v{ls[0]}, v{PB+1}")
A(f"  v_add_f32 v21, v{ls[0]}, v{ls[1]}")
for i in range(1, 4):
    if i >= 2: A(f"  v_add_f32 v21, v21, v{ls[i]}")
    A(f"  v_fmac_f32 v22, v{ls[i]}, v{PB+4*i}")
    A(f"  v_fmac_f32 v23, v{ls[i]}, v{PB+4*i+1}")
for r in (2, 4, 8):
    for x in (21, 22, 23):
        A(f"  v_add_f32_dpp v{x}, v{x}, v{x} row_ror:{r} row_mask:0xf bank_mask:0xf")
A("  v_rcp_f32 v21, v21")
A("  s_nop 0")
A("  v_mul_f32 v22, v22, v21")
A("  v_mul_f32 v23, v23, v21")
A("  v_cvt_pk_bf16_f32 v22, v22, v23")
A("  s_nop 1")
for p in range(2):
    for c in range(8):
        A(f"  v_dot2c_f32_bf16_dpp v{AA+c}, v22, v{WP+8*p+c} quad_perm:[{p},{p},{p},{p}] row_mask:0xf bank_mask:0xf")
A("  s_nop 2")
redrq(AA)
A("  s_cmp_eq_u32 s56, 0")
A("  s_cbranch_scc1 Lhlate")
A("Lhback:")
A(f"  v_fma_f32 v24, v{AA}, v28, v{BA}")
A(f"  v_fma_f32 v25, v{AA+1}, v28, v{BA+1}")
A("  v_add3_u32 v26, v24, v25, s36")
store2("global_store_dwordx4 v19, v[24:27], s[58:59]")
stamp(11)
if B3: A("  s_barrier")
stamp_store()
A("  s_endpgm")
A("Lhtry:")
A(f"  v_mov_b32 v25, {L_HF}")
A("  ds_read_b32 v25, v25")
A("  ds_read_b32 v24, v9")
A("  s_waitcnt lgkmcnt(0)")
A("  v_readfirstlane_b32 s56, v25")
A("  s_cmp_eq_u32 s56, 0")
A("  s_cbranch_scc1 LBchk")
bpart()
A("  s_branch LBchk")
A("Lhlate:")
A("  s_mov_b32 s42, 0")
A("Lhl2:")
A(f"  v_mov_b32 v25, {L_HF}")
A("  ds_read_b32 v25, v25")
A("  ds_read_b32 v24, v9")
A("  s_add_u32 s42, s42, 1")
A("  s_waitcnt lgkmcnt(0)")
A("  v_readfirstlane_b32 s56, v25")
A(f"  s_cmp_ge_u32 s42, {SPIN}")
A("  s_cbranch_scc1 Lhl3")
A("  s_cmp_eq_u32 s56, 0")
A("  s_cbranch_scc1 Lhl2")
A("Lhl3:")
bpart()
A("  s_branch Lhback")
if LAZYB:
    A("LQsb:")
    A("  s_mov_b32 exec_lo, 0xff")
    A("  s_mov_b32 exec_hi, 0xff")
    A(f"  global_store_dwordx4 v7, v[{AC}:{AC+3}], s[30:31] sc1")
    A("  s_mov_b64 exec, -1")
    A("  s_branch LQsbr")
for n, ins in store2.tail:
    A(f"Lslow{n}:")
    A(f"  {ins} sc1")
    A(f"  s_branch Lsd{n}")
A("Lend:")
A("  s_endpgm")
L += footer(248, 100)
open(sys.argv[1], "w").write("\n".join(L) + "\n")
```

```python
import sys, struct, math
from common import *

opts = {}
for o in (sys.argv[2].split(",") if len(sys.argv) > 2 else []):
    k, _, v = o.partition("=")
    opts[k] = v
STAMPS = "stamps" in opts
NT = "" if "nont" in opts else " nt"
NTW = "" if ("nont" in opts or "nontw" in opts) else " nt"
SLOW = "slow" in opts
NPA = int(opts.get("npa", 6))
W1G = int(opts.get("w1g", 4))
BX = "nobx" not in opts
PIPE = "nopipe" not in opts
PIPEB = "pipeb" in opts

def f32(x): return "0x%08x" % struct.unpack("<I", struct.pack("<f", x))[0]

QS, HS, C2, BS, C1, QB, ST = 0x10000, 0x20000, 0x8000, 0x40000, 0x140000, 0x290000, 0x400000
SLOWOFF = 0x800000
L_Q = 0; L_H = 1280; L_G = 1296; L_F = 1304; L_ML = 1344; L_C = 1472; L_HF = 1308; L_JUNK = 1600; L_O = 2304
LDS_BYTES = L_O + 4 * 2304
SPIN = 0x100000

L = header(256, 384, LDS_BYTES); A = L.append
def stamp(k):
    if STAMPS: A(f"  s_memrealtime s[{64+2*k}:{65+2*k}]")
def stamp_store():
    if not STAMPS: return
    A("  s_waitcnt lgkmcnt(0)")
    A("  s_mul_i32 s60, s2, 6")
    A("  s_add_u32 s60, s60, s34")
    A("  s_lshl_b32 s60, s60, 7")
    A(f"  s_add_u32 s60, s60, {ST}")
    A("  v_mov_b32 v4, s60")
    A("  s_mov_b64 exec, 1")
    for k in range(16):
        A(f"  v_mov_b32 v6, s{64+2*k}")
        A(f"  v_mov_b32 v7, s{65+2*k}")
        A(f"  global_store_dwordx2 v4, v[6:7], s[30:31] offset:{8*k}")
        A("  s_nop 1")
def lgkm(n):
    A(f"  s_waitcnt lgkmcnt({0 if STAMPS else n})")
def tag_compute():
    A("  s_and_b32 s36, s35, 0xfffffff8")
    A("  s_add_u32 s36, s36, 0x9e3779b8")
def base58():
    A('  s_cmp_eq_u32 s57, 0')
    A(f'  s_cselect_b32 s58, {SLOWOFF}, 0')
    A('  s_add_u32 s58, s30, s58')
    A('  s_addc_u32 s59, s31, 0')
def store2(ins):
    n = store2.n; store2.n += 1
    A("  s_cmp_eq_u32 s57, 0")
    A(f"  s_cbranch_scc1 Lslow{n}")
    A(f"  {ins}{' nt' if 'stnt' in opts else ''}")
    A(f"Lsd{n}:")
    store2.tail.append((n, ins))
store2.n = 0; store2.tail = []
def red8(regs, tmp, op="add"):
    for r in regs: A(f"  v_{op}_f32_dpp v{r}, v{r}, v{r} row_ror:8 row_mask:0xf bank_mask:0xf")
    for sw in ("32", "16"):
        for r, t in zip(regs, tmp): A(f"  v_mov_b32 v{t}, v{r}")
        A(f"  s_nop {max(0, 2 - len(regs))}")
        for r, t in zip(regs, tmp): A(f"  v_permlane{sw}_swap_b32 v{r}, v{t}")
        for r, t in zip(regs, tmp): A(f"  v_{op}_f32 v{r}, v{r}, v{t}")
def mpoll(name, loads, checks, pend, cnt="s42"):
    n = len(loads)
    for p in pend: A(f"  s_mov_b64 {p}, -1")
    A(f"  s_mov_b32 {cnt}, 0")
    if PIPE:
        for ld in loads: A(f"  {ld}")
    A(f"L{name}poll:")
    for i, ld in enumerate(loads):
        A(f"  s_mov_b64 exec, {pend[i]}")
        if not PIPE: A(f"  s_cbranch_execz L{name}s{i}")
        A(f"  {ld}")
        A(f"L{name}s{i}:")
    A("  s_mov_b64 exec, -1")
    A(f"  s_add_u32 {cnt}, {cnt}, 1")
    A(f"  s_waitcnt vmcnt({n if PIPE else 0})")
    checks()
    A(f"  s_or_b64 s[40:41], {pend[0]}, {pend[1]}")
    A(f"  s_or_b64 vcc, {pend[2]}, {pend[3]}")
    A(f"  s_or_b64 s[40:41], s[40:41], vcc")
    A(f"  s_cbranch_scc0 L{name}got")
    A(f"  s_cmp_lt_u32 {cnt}, {SPIN}")
    A(f"  s_cbranch_scc1 L{name}poll")
    A(f"L{name}got:")

DR = 32; XM, AC = 96, 128
if STAMPS: A("  s_memrealtime s[64:65]")
A("  s_load_dwordx16 s[4:19], s[0:1], 0")
A("  s_load_dwordx8 s[20:27], s[0:1], 64")
A("  s_load_dwordx4 s[28:31], s[0:1], 96")
A("  v_lshrrev_b32 v1, 6, v0")
A("  v_and_b32 v2, 63, v0")
A("  s_cmp_ge_u32 s2, 256")
A("  v_readfirstlane_b32 s34, v1")
A("  s_cbranch_scc1 Lend")
A("  s_and_b32 s32, s2, 7")
A("  s_lshr_b32 s33, s2, 3")
A("  s_cmp_ge_u32 s34, 2")
A("  s_cbranch_scc1 LA")
A("  s_lshl_b32 s37, s32, 10")
A("  s_lshr_b32 s38, s33, 2")
A("  s_lshl_b32 s38, s38, 7")
A("  s_add_u32 s37, s37, s38")
A("  s_and_b32 s39, s33, 3")
A("  s_lshl_b32 s38, s39, 20")
A("  s_add_u32 s37, s37, s38")
A("  s_lshl_b32 s39, s39, 8")
A(f"  s_mul_i32 s38, s32, {(512//W1G)*3584}")
A("  s_lshl_b32 s40, s33, 7")
A("  s_add_u32 s38, s38, s40")
A(f"  s_lshl_b32 s40, s32, {7 if W1G == 8 else 8}")
A(f"  s_mov_b32 s52, {28672 if W1G == 8 else 57344}")
A("  s_movk_i32 s55, 3584")
A("  s_cmp_eq_u32 s34, 0")
A("  s_cselect_b32 s37, s37, s38")
A("  s_cselect_b32 s39, s39, s40")
A("  s_cselect_b32 s52, 0x20000, s52")
A("  s_cselect_b32 s55, 0x2000, s55")
if W1G == 8: A("  s_cselect_b32 s53, 5, 4")
A("  v_lshrrev_b32 v4, 3, v2")
A("  v_and_b32 v3, 7, v2")
A("  v_mul_u32_u24 v5, s52, v4")
A("  v_lshlrev_b32 v6, 4, v3")
A("  v_add3_u32 v5, v5, v6, s37")
if W1G == 8:
    A("  v_lshlrev_b32 v6, s53, v4")
    A("  v_add_u32 v6, s39, v6")
else:
    A("  v_lshl_add_u32 v6, v4, 5, s39")
A("  s_cbranch_scc1 Lnpf")
A("  s_getpc_b64 s[40:41]")
A("Lpc:")
A("  v_lshlrev_b32 v7, 7, v2")
A("  v_min_u32 v7, Lend-Lpc, v7")
A("  global_load_dword v27, v7, s[40:41]")
A("  s_cmp_ge_u32 s33, 28")
A("  s_cbranch_scc1 LMskip")
if W1G == 4:
    A("  s_cmp_ge_u32 s32, 4")
    A("  s_cbranch_scc1 LMskip")
A("  s_cmp_eq_u32 s34, 0")
A("Lnpf:")
A("  s_setprio 3")
A("  s_waitcnt lgkmcnt(0)")
stamp(1)
A("  s_cselect_b64 s[40:41], s[10:11], s[16:17]")
A("  global_load_dwordx4 v[8:11], v6, s[4:5]")
if W1G == 8: A("  s_cbranch_scc0 Lgo")
A("  global_load_dwordx4 v[12:15], v6, s[4:5] offset:16")
A("Lgo:")
for i in range(16):
    A(f"  global_load_dwordx4 v[{DR+4*i}:{DR+4*i+3}], v5, s[40:41]{NTW}")
    if i < 15: A(f"  v_add_u32 v5, s55, v5")
    if i == 7 and W1G == 8: A("  s_cbranch_scc0 LM")
if W1G == 4: A("  s_cbranch_scc0 LM")

B0K = int(opts.get("b0k", -1))
if B0K < 0: A("  s_barrier")
A("  s_load_dword s35, s[30:31], 0")
A("  s_getreg_b32 s39, hwreg(HW_REG_XCC_ID)")
stamp(2)
for c in range(8): A(f"  v_mov_b32 v{AC+c}, 0")
A("  s_and_b32 s39, s39, 7")
A("  s_lshl_b32 s37, s32, 13")
A(f"  s_add_u32 s37, s37, {QS}")
A("  s_lshl_b32 s38, s33, 8")
A("  s_add_u32 s38, s38, s37")
A("  v_lshrrev_b32 v5, 5, v2")
A("  v_lshlrev_b32 v5, 7, v5")
A("  v_lshl_add_u32 v5, v3, 4, v5")
A("  v_add_u32 v5, s38, v5")
A(f"  v_add_u32 v7, {QB-QS}, v5")
A("  v_lshlrev_b32 v6, 10, v4")
A("  v_lshl_add_u32 v6, v3, 4, v6")
A("  v_add_u32 v6, s37, v6")
A("  v_lshrrev_b32 v140, 4, v2")
A("  v_mul_u32_u24 v140, 320, v140")
A("  v_and_b32 v141, 15, v2")
A("  v_lshl_add_u32 v140, v141, 4, v140")
A("  s_lshl_b32 s37, s32, 17")
A("  s_lshl_b32 s38, s33, 12")
A("  s_add_u32 s37, s37, s38")
A(f"  s_add_u32 s37, s37, {C1}")
A("  v_lshl_add_u32 v141, v2, 4, s37")
A("  s_lshl_b32 s37, s33, 10")
A("  s_lshl_b32 s38, s32, 7")
A("  s_add_u32 s37, s37, s38")
A(f"  s_add_u32 s37, s37, {C2}")
A("  v_lshl_add_u32 v143, v2, 4, s37")
A("  v_lshlrev_b32 v142, 4, v3")
A(f"  v_add_u32 v142, {L_C}, v142")
A(f"  v_mov_b32 v144, {L_F}")
A("  s_mov_b32 s44, 0x07060503")
A("  s_mov_b32 s45, 0x07060502")
A("  s_mov_b32 s46, 0x07060501")
A("  s_mov_b32 s47, 0x04000c0c")
A("  s_mov_b32 s48, 0x0706000c")
A("  s_waitcnt vmcnt(16)")
def xmasks(n):
    for k in range(n):
        A(f"  v_and_b32 v{XM+4*k}, 0xffff, v{8+k}")
        A(f"  v_lshlrev_b32 v{XM+1+4*k}, 16, v{8+k}")
        A(f"  v_lshrrev_b32 v{XM+2+4*k}, 16, v{8+k}")
        A(f"  v_and_b32 v{XM+3+4*k}, 0xffff0000, v{8+k}")
def dots(n, extra, bar=-1):
    for i in range(n):
        A(f"  s_waitcnt vmcnt({n-1-i+extra})")
        if i == bar: A("  s_barrier")
        for c in range(4):
            A(f"  v_dot2c_f32_bf16 v{AC+2*c}, v{DR+4*i+c}, v{XM+2*i}")
            A(f"  v_dot2c_f32_bf16 v{AC+1+2*c}, v{DR+4*i+c}, v{XM+1+2*i}")
xmasks(8)
dots(16, 0, B0K)
stamp(4)
A("  s_waitcnt lgkmcnt(0)")
tag_compute()
A("  s_or_b32 s43, s36, s39")
for c in range(4): A(f"  v_permlane32_swap_b32 v{AC+c}, v{AC+4+c}")
for c in range(4): A(f"  v_add_f32 v{AC+c}, v{AC+c}, v{AC+4+c}")
for c in range(4): A(f"  v_add_f32_dpp v{AC+c}, v{AC+c}, v{AC+c} row_ror:8 row_mask:0xf bank_mask:0xf")
for c in range(4): A(f"  v_mov_b32 v{AC+4+c}, v{AC+c}")
for c in range(4): A(f"  v_permlane16_swap_b32 v{AC+c}, v{AC+4+c}")
for c in range(4): A(f"  v_add_f32 v{AC+c}, v{AC+c}, v{AC+4+c}")
for c in range(3): A(f"  v_perm_b32 v{AC+c}, v{AC+c}, v{AC+3}, s{44+c}")
A(f"  v_add3_u32 v{AC+3}, v{AC}, v{AC+1}, v{AC+2}")
A(f"  v_add_u32 v{AC+3}, s43, v{AC+3}")
A("  s_mov_b32 exec_lo, 0xff")
A("  s_mov_b32 exec_hi, 0xff")
A(f"  global_store_dwordx4 v5, v[{AC}:{AC+3}], s[30:31]")
LAZYB = "nolazy" not in opts
if not LAZYB: A(f"  global_store_dwordx4 v7, v[{AC}:{AC+3}], s[30:31] sc1")
A("  s_mov_b64 exec, -1")
stamp(5)
if BX: A("  s_barrier")
stamp(14)
PQ8 = [f"s[{4+2*i}:{5+2*i}]" for i in range(8)]
for p in PQ8: A(f"  s_mov_b64 {p}, -1")
A("  s_mov_b32 s42, 0")
SU = 64
BY = BX and "noby" not in opts
if BY:
    for gI in range(8):
        A(f"  global_load_dwordx4 v[{DR+gI*4}:{DR+gI*4+3}], v6, s[30:31] offset:{(gI>>1)*256+(gI&1)*128} sc1")
    A("  s_barrier")
    A("  s_branch LQiss")
A("LQpoll:")
A(f"  s_cmp_lt_u32 s42, {NPA}")
A("  s_cbranch_scc1 LQpa")
A(f"  v_xor_b32 v6, {QB^QS}, v6")
A("LQpa:")
for gI in range(8):
    ks, hf = gI >> 1, gI & 1
    r = DR + gI*4
    A(f"  s_mov_b64 exec, {PQ8[gI]}")
    A(f"  global_load_dwordx4 v[{r}:{r+3}], v6, s[30:31] offset:{ks*256+hf*128} sc1")
A("  s_mov_b64 exec, -1")
A("LQiss:")
A("  s_add_u32 s42, s42, 1")
stamp(3)
for gI in range(8):
    ks, hf = gI >> 1, gI & 1
    r = DR + gI*4
    A(f"  s_waitcnt vmcnt({7-gI})")
    A(f"  v_add3_u32 v{8+gI}, v{r}, v{r+1}, v{r+2}")
    A(f"  v_perm_b32 v{72+gI}, v{r}, v{r+1}, s47")
    A(f"  v_sub_u32 v{8+gI}, v{r+3}, v{8+gI}")
    A(f"  v_perm_b32 v{72+gI}, v{72+gI}, v{r+2}, s48")
    A(f"  v_xor_b32 v{8+gI}, s43, v{8+gI}")
    src = [r, r+1, r+2, 72+gI]
    if ks == 1:
        p = [r-8, r-7, r-6, 72+gI-2]
        for c in range(4): A(f"  v_add_f32 v{SU+4*hf+c}, v{p[c]}, v{src[c]}")
    elif ks >= 2:
        for c in range(4): A(f"  v_add_f32 v{SU+4*hf+c}, v{SU+4*hf+c}, v{src[c]}")
    A(f"  v_cmp_le_u32 {PQ8[gI]}, 8, v{8+gI}")
    if gI == 6:
        for c in range(2): A(f"  v_cvt_pk_bf16_f32 v{80+c}, v{SU+2*c}, v{SU+2*c+1}")
for c in range(2, 4): A(f"  v_cvt_pk_bf16_f32 v{80+c}, v{SU+2*c}, v{SU+2*c+1}")
A(f"  ds_write_b128 v140, v[80:83]")
A(f"  s_or_b64 s[40:41], {PQ8[0]}, {PQ8[1]}")
A(f"  s_or_b64 s[50:51], {PQ8[2]}, {PQ8[3]}")
A(f"  s_or_b64 s[52:53], {PQ8[4]}, {PQ8[5]}")
A(f"  s_or_b64 vcc, {PQ8[6]}, {PQ8[7]}")
A("  s_or_b64 s[40:41], s[40:41], s[50:51]")
A("  s_or_b64 vcc, vcc, s[52:53]")
A("  s_or_b64 s[40:41], s[40:41], vcc")
A("  s_cbranch_scc0 LQgot")
if LAZYB:
    A(f"  s_cmp_lg_u32 s42, {int(opts.get('lazyr', 2))}")
    A("  s_cbranch_scc1 LQnb")
    A("  s_mov_b32 exec_lo, 0xff")
    A("  s_mov_b32 exec_hi, 0xff")
    A(f"  global_store_dwordx4 v7, v[{AC}:{AC+3}], s[30:31] sc1")
    A("LQnb:")
A(f"  s_cmp_lt_u32 s42, {SPIN}")
A("  s_cbranch_scc1 LQpoll")
A("LQgot:")
A("  v_or3_b32 v8, v8, v9, v10")
A("  v_or3_b32 v11, v11, v12, v13")
A("  v_or3_b32 v8, v8, v14, v15")
A("  v_or_b32 v8, v8, v11")
A("  v_cmp_ne_u32 vcc, 0, v8")
A("  s_cmp_eq_u64 vcc, 0")
A("  s_cselect_b32 s57, 1, 0")
if SLOW: A("  s_mov_b32 s57, 0")
if LAZYB:
    A("  s_cmp_eq_u32 s57, 0")
    A("  s_cbranch_scc1 LQsb")
    A("LQsbr:")
A("  v_mov_b32 v4, s57")
A("  ds_write_b32 v144, v4")
if STAMPS: A("  s_mov_b32 s90, s42"); A("  s_mov_b32 s91, 0")
stamp(6)
A("  s_waitcnt lgkmcnt(0)")
A("  s_barrier")
base58()
A("  s_barrier")
stamp(7)
if "nob3" not in opts: A("  s_barrier")
PQ = ["s[44:45]", "s[46:47]", "s[48:49]", "s[50:51]"]
def chkF():
    for i in range(4): A(f"  v_add3_u32 v{24+i}, v{8+4*i}, v{9+4*i}, s36")
    A("  v_add_f32 v28, v8, v12")
    A("  v_add_f32 v29, v9, v13")
    for i in range(4): A(f"  v_cmp_ne_u32 {PQ[i]}, v{24+i}, v{10+4*i}")
    A("  v_add_f32 v30, v16, v20")
    A("  v_add_f32 v31, v17, v21")
    A("  v_add_f32 v28, v28, v30")
    A("  v_add_f32 v29, v29, v31")
mpoll("F", [f"global_load_dwordx3 v[{8+4*i}:{10+4*i}], v141, s[58:59] offset:{1024*i} sc1" for i in range(4)], chkF, PQ)
stamp(8)
red8([28, 29], [36, 37])
A("  v_add3_u32 v30, v28, v29, s36")
A("  s_mov_b64 exec, 0xff")
A("  global_store_dwordx4 v143, v[28:31], s[30:31] sc1")
A("  ds_write_b96 v142, v[28:30]")
stamp(9)
stamp(11)
stamp_store()
A("  s_endpgm")

def gate_loads():
    A("  v_lshlrev_b32 v6, 4, v2")
    A("  global_load_dwordx4 v[16:19], v6, s[4:5]")
    A("  global_load_dwordx4 v[20:23], v6, s[24:25]")
    A("  s_lshl_b32 s37, s33, 5")
    A("  v_lshl_add_u32 v144, v3, 2, s37")
    A("  global_load_dword v145, v144, s[22:23]")
def gate_compute():
    for k in range(4):
        A(f"  v_lshlrev_b32 v{80+2*k}, 16, v{16+k}")
        A(f"  v_and_b32 v{81+2*k}, 0xffff0000, v{16+k}")
        A(f"  v_lshlrev_b32 v{88+2*k}, 16, v{20+k}")
        A(f"  v_and_b32 v{89+2*k}, 0xffff0000, v{20+k}")
    for k in range(8): A(f"  v_mul_f32 v{80+k}, v{80+k}, v{88+k}")
    for k in range(4): A(f"  v_cvt_pk_bf16_f32 v{88+k}, v{80+2*k}, v{81+2*k}")
    for k in range(4):
        A(f"  v_lshlrev_b32 v{80+2*k}, 16, v{88+k}")
        A(f"  v_and_b32 v{81+2*k}, 0xffff0000, v{88+k}")
    for k in range(4): A(f"  v_add_f32 v{80+2*k}, v{80+2*k}, v{81+2*k}")
    A("  v_add_f32 v80, v80, v82")
    A("  v_add_f32 v84, v84, v86")
    A("  v_add_f32 v80, v80, v84")
    for sw in ("32", "16"):
        A("  v_mov_b32 v81, v80")
        A("  s_nop 1")
        A(f"  v_permlane{sw}_swap_b32 v80, v81")
        A("  v_add_f32 v80, v80, v81")
    for r in (8, 4, 2, 1):
        A("  s_nop 1")
        A(f"  v_add_f32_dpp v80, v80, v80 row_ror:{r} row_mask:0xf bank_mask:0xf")
    A("  v_cvt_pk_bf16_f32 v80, v80, v80")
    A("  v_lshlrev_b32 v80, 16, v80")
    A(f"  v_mul_f32 v80, {f32(-math.log2(math.e))}, v80")
    A("  v_exp_f32 v80, v80")
    A("  s_nop 0")
    A("  v_add_f32 v80, 1.0, v80")
    A("  v_rcp_f32 v80, v80")
    A("  s_nop 0")
    A("  v_cvt_pk_bf16_f32 v80, v80, v80")
    A("  v_lshlrev_b32 v80, 16, v80")
    A("  v_sub_f32 v81, 1.0, v80")
    A("  v_cvt_pk_bf16_f32 v81, v81, v81")
    A("  v_lshlrev_b32 v81, 16, v81")
    A(f"  v_mov_b32 v82, {L_G}")
    A("  ds_write_b64 v82, v[80:81]")
A("LMskip:")
A("  s_waitcnt lgkmcnt(0)")
gate_loads()
A("  s_barrier")
A("  s_load_dword s35, s[30:31], 0")
A("  s_waitcnt vmcnt(0) lgkmcnt(0)")
tag_compute()
A("  s_mov_b32 s56, 0")
A("  s_branch LMgate")
A("LM:")
gate_loads()
A("  s_barrier")
A("  s_load_dword s35, s[30:31], 0")
stamp(2)
NM = 8 if W1G == 8 else 16
for c in range(8): A(f"  v_mov_b32 v{AC+c}, 0")
A("  s_lshl_b32 s37, s33, 12")
A(f"  s_add_u32 s37, s37, {HS}")
A("  s_lshl_b32 s38, s32, 9")
A("  s_add_u32 s38, s38, s37")
A("  v_lshl_add_u32 v5, v3, 3, v4")
A("  v_lshl_add_u32 v5, v5, 3, s38")
A(f"  s_waitcnt vmcnt({NM+3})")
xmasks(NM // 2)
dots(NM, 3)
stamp(3)
A("  s_waitcnt lgkmcnt(0)")
tag_compute()
for c in range(4): A(f"  v_permlane32_swap_b32 v{AC+c}, v{AC+4+c}")
for c in range(4): A(f"  v_add_f32 v{AC+c}, v{AC+c}, v{AC+4+c}")
A("  s_nop 0")
for c in range(2): A(f"  v_permlane16_swap_b32 v{AC+c}, v{AC+2+c}")
for c in range(2): A(f"  v_add_f32 v{AC+c}, v{AC+c}, v{AC+2+c}")
A("  s_nop 0")
A(f"  v_add_f32_dpp v{AC}, v{AC}, v{AC} row_ror:8 row_mask:0xf bank_mask:0x3")
A(f"  v_add_f32_dpp v{AC}, v{AC+1}, v{AC+1} row_ror:8 row_mask:0xf bank_mask:0xc")
A(f"  v_xor_b32 v{AC+1}, s36, v{AC}")
HE = "hlate" not in opts
if HE:
    A(f"  global_store_dwordx2 v5, v[{AC}:{AC+1}], s[30:31] sc1")
    A("  s_waitcnt vmcnt(1)")
else:
    A("  s_waitcnt vmcnt(0)")
    A("  s_mov_b32 s56, 1")
A("LMgate:")
gate_compute()
A("  s_min_u32 s49, s33, 27")
A("  s_lshl_b32 s37, s49, 12")
A("  s_lshl_b32 s38, s32, 6")
A("  s_add_u32 s38, s38, s37")
A(f"  s_add_u32 s38, s38, {HS}")
A(f"  v_and_b32 v146, {W1G-1}, v4")
A("  v_lshlrev_b32 v146, 9, v146")
A("  v_lshl_add_u32 v146, v3, 3, v146")
A("  v_add_u32 v146, s38, v146")
A("  s_lshl_b32 s37, s49, 7")
A("  s_lshl_b32 s38, s32, 4")
A("  s_add_u32 s37, s37, s38")
A("  v_lshl_add_u32 v147, v3, 1, s37")
A("  v_lshlrev_b32 v148, 1, v3")
A(f"  v_add_u32 v148, {L_H}, v148")
A("  s_lshl_b32 s37, s32, 17")
A("  s_lshl_b32 s38, s33, 12")
A("  s_add_u32 s37, s37, s38")
A(f"  s_add_u32 s37, s37, {BS}")
A("  v_lshl_add_u32 v8, v2, 4, s37")
A(f"  v_add_u32 v11, {C1-BS}, v8")
A(f"  v_mov_b32 v152, {L_HF}")
A("  v_mov_b32 v153, 0")
A("  ds_write_b32 v152, v153")
A("  global_load_ushort v149, v147, s[18:19]")
if BX: A("  s_barrier")
if not HE:
    A("  s_cmp_eq_u32 s56, 0")
    A("  s_cbranch_scc1 LMns")
    A(f"  global_store_dwordx2 v5, v[{AC}:{AC+1}], s[30:31] sc1")
    A("LMns:")
MPRE = "mpre" in opts
if BY and not MPRE: A("  s_barrier")
A("  global_load_dwordx2 v[150:151], v146, s[30:31] sc1")
for i in range(4): A(f"  global_load_dwordx4 v[{32+4*i}:{35+4*i}], v8, s[30:31] offset:{1024*i} sc1")
C1E = "c1late" not in opts
if C1E:
    for i in range(4): A(f"  global_load_dwordx4 v[{48+4*i}:{51+4*i}], v11, s[30:31] offset:{1024*i} sc1")
if BY and MPRE: A("  s_barrier")
A("  s_lshl_b32 s37, s33, 10")
A(f"  s_add_u32 s37, s37, {C2}")
A("  v_lshl_add_u32 v142, v2, 4, s37")
A("  v_lshlrev_b32 v143, 4, v3")
A(f"  v_add_u32 v143, {L_C}, v143")
A("  s_lshl_b32 s37, s32, 3")
A("  s_lshl_b64 s[46:47], 0xff, s37")
A("  v_lshlrev_b32 v84, 16, v145")
A("  v_and_b32 v85, 0xffff0000, v145")
A("  v_mul_f32 v84, v84, v81")
A("  v_mul_f32 v85, v85, v81")
A("  v_mov_b32 v12, 0")
A("  v_mov_b32 v13, 0")
A("  v_mov_b32 v14, 1")
A("  ds_write_b96 v143, v[12:14]")
A("  s_waitcnt lgkmcnt(0)")
stamp(4)
A("  s_barrier")
if not C1E:
    for i in range(4): A(f"  global_load_dwordx4 v[{48+4*i}:{51+4*i}], v11, s[30:31] offset:{1024*i} sc1")
A("  s_barrier")
A("  s_mov_b32 s42, 0")
A("  s_waitcnt vmcnt(8)")
A("  s_branch LHchk")
A("LHpoll:")
A("  global_load_dwordx2 v[150:151], v146, s[30:31] sc1")
A("  s_add_u32 s42, s42, 1")
A("  s_waitcnt vmcnt(0)")
A("LHchk:")
A("  v_xor_b32 v9, v150, v151")
A("  v_cmp_ne_u32 vcc, s36, v9")
A("  s_cbranch_vccz LHgot")
A(f"  s_cmp_lt_u32 s42, {SPIN}")
A("  s_cbranch_scc1 LHpoll")
A("LHgot:")
A("  v_mov_b32 v8, v150")
A("  s_cmp_lt_u32 s33, 28")
A("  s_cselect_b32 s40, -1, 0")
if W1G == 8:
    red8([8], [9])
else:
    A("  v_add_f32_dpp v8, v8, v8 row_ror:8 row_mask:0xf bank_mask:0xf")
    A("  v_mov_b32 v9, v8")
    A("  s_nop 1")
    A("  v_permlane16_swap_b32 v8, v9")
    A("  v_add_f32 v8, v8, v9")
A("  v_cvt_pk_bf16_f32 v8, v8, v8")
A("  v_lshlrev_b32 v149, 16, v149")
A("  v_lshlrev_b32 v8, 16, v8")
A("  v_add_f32 v8, v8, v149")
A("  v_cvt_pk_bf16_f32 v8, v8, v8")
A("  v_lshlrev_b32 v8, 16, v8")
k1 = -2.0 * math.log2(math.e) * math.sqrt(2.0 / math.pi)
k2 = k1 * 0.044715
A(f"  s_mov_b32 s41, {f32(k2)}")
A(f"  v_mov_b32 v10, {f32(k1)}")
A("  v_mul_f32 v9, v8, v8")
A("  v_fma_f32 v9, v9, s41, v10")
A("  v_mul_f32 v9, v9, v8")
A("  v_exp_f32 v9, v9")
A("  s_nop 0")
A("  v_add_f32 v9, 1.0, v9")
A("  v_rcp_f32 v9, v9")
A("  s_nop 0")
A("  v_mul_f32 v8, v8, v9")
A("  s_nop 1")
A("  v_mov_b32_dpp v9, v8 quad_perm:[1,0,3,2] row_mask:0xf bank_mask:0xf")
A("  v_cvt_pk_bf16_f32 v8, v8, v9")
A("  v_and_b32 v8, s40, v8")
A("  s_mov_b64 exec, 0x55")
A("  ds_write_b32 v148, v8")
A("  s_mov_b64 exec, -1")
A("  v_mov_b32 v153, 1")
A("  ds_write_b32 v152, v153")
stamp(12)
if STAMPS: A("  s_mov_b32 s90, s42"); A("  s_mov_b32 s91, 0")
B3 = "nob3" not in opts
A("  s_and_b32 s37, s33, 7")
A("  s_cmp_lg_u32 s37, s32")
if B3:
    A("  s_cbranch_scc1 LMnf")
    A("  global_load_dwordx3 v[12:14], v142, s[30:31] sc1")
    A("LMnf:")
    A("  s_barrier")
A("  s_cbranch_scc1 LMend")
A("  s_mov_b64 s[44:45], -1")
A("  s_mov_b32 s42, 0")
if PIPE:
    A("  s_andn2_b64 exec, s[44:45], s[46:47]")
    A("  global_load_dwordx3 v[12:14], v142, s[30:31] sc1")
A("LGpoll:")
A("  s_andn2_b64 exec, s[44:45], s[46:47]")
if not PIPE: A("  s_cbranch_execz LGs0")
A("  global_load_dwordx3 v[12:14], v142, s[30:31] sc1")
A("LGs0:")
A("  s_and_b64 exec, s[44:45], s[46:47]")
A("  ds_read_b96 v[12:14], v143")
A("  s_mov_b64 exec, -1")
A("  s_add_u32 s42, s42, 1")
A(f"  s_waitcnt vmcnt({1 if PIPE else 0}) lgkmcnt(0)")
A("  v_add3_u32 v16, v12, v13, s36")
A("  v_mov_b32 v18, v12")
A("  v_mov_b32 v19, v13")
A("  v_cmp_ne_u32 s[44:45], v16, v14")
A("  s_cmp_lg_u64 s[44:45], 0")
A("  s_cbranch_scc0 LGgot")
A(f"  s_cmp_lt_u32 s42, {SPIN}")
A("  s_cbranch_scc1 LGpoll")
A("LGgot:")
stamp(10)
red8([18, 19], [10, 11])
A("  v_add_f32 v18, v18, v84")
A("  v_add_f32 v19, v19, v85")
A("  v_cvt_pk_bf16_f32 v8, v18, v19")
A("  s_mov_b64 exec, 0xff")
A("  global_store_dword v144, v8, s[26:27]")
A("  s_cmp_lg_u32 s2, 0")
A("  s_cbranch_scc1 LMend")
A("  s_mov_b64 exec, 1")
A("  v_mov_b32 v3, 0")
A("  v_mov_b32 v9, s36")
A("  global_store_dword v3, v9, s[30:31]")
A("LMend:")
stamp(11)
stamp_store()
A("  s_endpgm")

KR, VR, VP, WO, W2, QR, PS, SR, AO, AL, ONE, WP = 32, 64, 96, 128, 144, 152, 168, 184, 192, 200, 204, 208
for _ in range(int(opts.get("pad", 0))): A("  s_nop 0")
A("LA:")
A("  s_sub_u32 s43, s34, 2")
A("  s_lshl_b32 s54, s32, 24")
A("  s_lshl_b32 s38, s33, 15")
A("  s_add_u32 s54, s54, s38")
A("  s_lshl_b32 s38, s43, 13")
A("  s_add_u32 s54, s54, s38")
A(f"  s_add_u32 s54, s54, {61440*256}")
A("  v_and_b32 v3, 15, v2")
A("  v_lshrrev_b32 v4, 4, v2")
A("  v_lshlrev_b32 v9, 4, v3")
A("  s_lshl_b32 s37, s32, 19")
A("  s_lshl_b32 s38, s33, 14")
A("  s_add_u32 s37, s37, s38")
A("  s_lshl_b32 s38, s33, 16")
A("  s_lshl_b32 s39, s32, 13")
A("  s_add_u32 s38, s38, s39")
A("  s_lshl_b32 s39, s43, 8")
A("  s_cmp_lt_u32 s33, 28")
A("  s_cselect_b32 s38, s38, s37")
A("  v_lshl_add_u32 v10, v4, 12, v9")
A("  v_lshl_add_u32 v11, v4, 11, v9")
A("  v_add3_u32 v10, v10, s37, v1" if False else "  s_add_u32 s37, s37, s39")
A("  s_add_u32 s38, s38, s39")
A("  v_add_u32 v10, s37, v10")
A("  v_add_u32 v11, s38, v11")
A("  v_lshl_add_u32 v7, v4, 10, v9")
A("  v_add_u32 v7, s54, v7")
A("  v_add_u32 v8, 0x1000, v7")
A("  v_lshlrev_b32 v5, 8, v3")
A("  v_lshl_add_u32 v5, v4, 4, v5")
A("  v_add_u32 v5, s54, v5")
A("  v_add_u32 v6, 0x1000, v5")
A("  s_cmp_lt_u32 s33, 28")
A("  s_waitcnt lgkmcnt(0)")
A("  s_cselect_b64 s[20:21], s[20:21], s[12:13]")
A("  s_barrier")
stamp(1)
KTS = "kts" in opts
vk = [f"  global_load_dwordx4 v[{VR+(t*4+rr)*4}:{VR+(t*4+rr)*4+3}], v{7+t}, s[8:9] offset:{256*rr}{NT}" for t in range(2) for rr in range(4)]
vk += [f"  global_load_dwordx4 v[{KR+(t*4+s_)*4}:{KR+(t*4+s_)*4+3}], v{5+t}, s[6:7] offset:{64*s_}{NT}" for s_ in range(4) for t in range(2)]
_A = A
setup = []
A = setup.append
A("  s_load_dword s35, s[30:31], 0")
for i in range(16): A(f"  v_mov_b32 v{PS+i}, 0")
for i in range(4): A(f"  v_mov_b32 v{ONE+i}, 0x3f803f80")
A("  s_mov_b32 s44, 0x05040100")
A("  s_mov_b32 s45, 0x07060302")
for a in range(4):
    A(f"  s_mov_b32 s{46+2*a}, 0x{(0x000f000f << (4*a)):08x}")
    A(f"  s_mov_b32 s{47+2*a}, 0x{(0x000f000f << (4*a)):08x}")
A("  v_and_b32 v12, 3, v2")
A("  v_mul_u32_u24 v12, 320, v12")
A("  v_lshl_add_u32 v12, v4, 4, v12")
A("  s_mul_i32 s37, s43, 2304")
A(f"  s_add_u32 s37, s37, {L_O}")
A("  v_mul_u32_u24 v13, 544, v4")
A("  v_lshl_add_u32 v13, v3, 4, v13")
A("  v_add_u32 v13, s37, v13")
A("  s_lshl_b32 s37, s43, 3")
A(f"  s_add_u32 s37, s37, {L_ML}")
A("  v_lshl_add_u32 v14, v2, 5, s37")
A(f"  v_lshlrev_b32 v15, 3, v2")
A(f"  v_add_u32 v15, {L_JUNK}, v15")
A("  v_cmp_gt_u32 vcc, 4, v2")
A("  s_nop 1")
A("  v_cndmask_b32 v14, v15, v14, vcc")
A("  v_bfe_u32 v21, v2, 3, 2")
A("  v_lshrrev_b32 v22, 5, v2")
A("  s_lshl_b32 s37, s43, 1")
A("  v_add_u32 v22, s37, v22")
A("  v_and_b32 v23, 3, v2")
A("  v_mul_u32_u24 v15, 544, v23")
A("  v_lshl_add_u32 v15, v22, 5, v15")
A("  v_bfe_u32 v23, v2, 2, 1")
A("  v_lshl_add_u32 v15, v23, 4, v15")
A("  v_lshl_add_u32 v15, v21, 2, v15")
A(f"  v_add_u32 v15, {L_O}, v15")
A("  v_lshlrev_b32 v16, 5, v21")
A(f"  v_add_u32 v16, {L_ML}, v16")
A("  v_lshl_add_u32 v17, v21, 3, v22")
A("  v_lshlrev_b32 v17, 12, v17")
A("  v_and_b32 v23, 7, v2")
A("  v_lshl_add_u32 v17, v23, 4, v17")
A("  s_lshl_b32 s37, s32, 17")
A("  s_lshl_b32 s38, s33, 7")
A("  s_add_u32 s37, s37, s38")
A(f"  s_add_u32 s39, s37, {BS}")
A("  v_add_u32 v17, s39, v17")
A("  v_lshrrev_b32 v19, 1, v3")
A("  v_lshlrev_b32 v19, 12, v19")
A("  v_and_b32 v23, 1, v3")
A("  v_lshl_add_u32 v19, v23, 6, v19")
A("  v_lshl_add_u32 v19, v4, 4, v19")
A("  s_lshl_b32 s38, s43, 15")
A("  s_add_u32 s39, s37, s38")
A(f"  s_add_u32 s39, s39, {C1}")
A("  v_add_u32 v19, s39, v19")
A("  s_lshl_b32 s37, s32, 17")
A("  s_lshl_b32 s38, s33, 12")
A("  s_add_u32 s37, s37, s38")
A(f"  s_add_u32 s37, s37, {BS}")
A("  v_lshrrev_b32 v18, 1, v3")
A("  v_lshlrev_b32 v18, 7, v18")
A("  v_lshl_add_u32 v18, v23, 4, v18")
A("  v_lshl_add_u32 v18, v4, 5, v18")
A("  v_add_u32 v18, s37, v18")
A(f"  v_mov_b32 v20, {L_G}")
A("  v_lshlrev_b32 v9, 2, v4")
A(f"  v_add_u32 v9, {L_H}, v9")
c_sc = (128 ** -0.5) * math.log2(math.e)
A(f"  s_mov_b32 s54, {f32(c_sc)}")
BA = 232; AA = 240
for c in range(16): A(f"  v_mov_b32 v{BA+c}, 0")
A = _A
IL0 = int(opts.get("il0", 6))
HB = int(opts.get("hb", 0))
NV = 16 - HB
per = -(-len(setup) // (NV - IL0))
k = 0
for i, x in enumerate(vk[:NV]):
    A(x)
    if i >= IL0 - 1 and i < NV - 1:
        n = per
        while k + n < len(setup) and ("vcc" in setup[k+n] or "s_nop" in setup[k+n]): n += 1
        for y in setup[k:k+n]: A(y)
        k += n
stamp(2)
if BX: A("  s_barrier")
for y in setup[k:]: A(y)
if BY: A("  s_barrier")
for x in vk[NV:]: A(x)
for i in range(4): A(f"  global_load_dwordx4 v[{WO+4*i}:{WO+4*i+3}], v10, s[12:13] offset:{1024*i}{NTW}")
for i in range(2): A(f"  global_load_dwordx4 v[{W2+4*i}:{W2+4*i+3}], v11, s[20:21] offset:{1024*i}{NTW}")
stamp(3)
for i in range(4):
    A(f"  s_waitcnt vmcnt({20-2*i})")
    t, rp = i >> 1, (i & 1) * 2
    for j in range(8):
        a = VR + (t*4+rp)*4 + (j >> 1); b = VR + (t*4+rp+1)*4 + (j >> 1)
        A(f"  v_perm_b32 v{VP+4*j+i}, v{b}, v{a}, s{44 + (j & 1)}")
A("  s_waitcnt lgkmcnt(0)")
tag_compute()
stamp(13)
if STAMPS:
    A("  s_waitcnt vmcnt(6)")
    stamp(12)
A("  s_barrier")
for s in range(4):
    A(f"  ds_read_b128 v[{QR+4*s}:{QR+4*s+3}], v12 offset:{64*s}")
A("  ds_read_b96 v[28:30], v20")
for s in range(4):
    A(f"  s_waitcnt vmcnt({6 + ((3-s) if KTS else (6-2*s))}) lgkmcnt({0 if STAMPS else 4-s})")
    if s == 3: stamp(5)
    for t in range(2):
        r = KR + (t*4+s)*4
        cin = "0" if s == 0 else f"v[{SR+4*t}:{SR+4*t+3}]"
        A(f"  v_mfma_f32_16x16x32_bf16 v[{SR+4*t}:{SR+4*t+3}], v[{r}:{r+3}], v[{QR+4*s}:{QR+4*s+3}], {cin}")
A("  s_waitcnt lgkmcnt(0)")
A("  v_readfirstlane_b32 s57, v30")
base58()
A("  s_nop 0")
A(f"  v_max3_f32 v21, v{SR}, v{SR+1}, v{SR+2}")
A(f"  v_max3_f32 v22, v{SR+3}, v{SR+4}, v{SR+5}")
A(f"  v_max3_f32 v21, v21, v{SR+6}, v{SR+7}")
A(f"  v_max_f32 v21, v21, v22")
for sw in ("32", "16"):
    A("  v_mov_b32 v22, v21")
    A("  s_nop 1")
    A(f"  v_permlane{sw}_swap_b32 v21, v22")
    A("  v_max_f32 v21, v21, v22")
A("  v_mul_f32 v21, s54, v21")
for i in range(8):
    A(f"  v_fma_f32 v{SR+i}, v{SR+i}, s54, -v21")
    if i >= 1: A(f"  v_exp_f32 v{SR+i-1}, v{SR+i-1}")
A(f"  v_exp_f32 v{SR+7}, v{SR+7}")
for a in range(4):
    A(f"  s_mov_b64 exec, s[{46+2*a}:{47+2*a}]")
    for i in range(4):
        A(f"  v_cvt_pk_bf16_f32 v{PS+4*a+i}, v{SR+2*i}, v{SR+2*i+1}")
    A("  s_mov_b64 exec, -1")
    A("  s_nop 0")
    if a == 0: stamp(6)
    for e in range(2):
        j = 2*a + e
        cin = "0" if a == 0 else f"v[{AO+4*e}:{AO+4*e+3}]"
        A(f"  v_mfma_f32_16x16x32_bf16 v[{AO+4*e}:{AO+4*e+3}], v[{PS+4*a}:{PS+4*a+3}], v[{VP+4*j}:{VP+4*j+3}], {cin}")
    if a == 0:
        A(f"  v_mfma_f32_16x16x32_bf16 v[{AL}:{AL+3}], v[{ONE}:{ONE+3}], v[{PS}:{PS+3}], 0")
A(f"  ds_write2_b32 v14, v21, v{AL} offset0:0 offset1:1")
A("  s_nop 5")
A(f"  ds_write_b128 v13, v[{AO}:{AO+3}]")
A(f"  ds_write_b128 v13, v[{AO+4}:{AO+7}] offset:256")
A("  s_waitcnt lgkmcnt(0)")
stamp(7)
A("  s_barrier")
A(f"  ds_read_b128 v[{KR+8}:{KR+11}], v16")
A(f"  ds_read_b128 v[{KR+12}:{KR+15}], v16 offset:16")
for w in range(4):
    A(f"  ds_read2st64_b32 v[{KR+2*w}:{KR+2*w+1}], v15 offset0:{9*w} offset1:{9*w+1}")
lgkm(4)
m = [KR+8, KR+10, KR+12, KR+14]; l = [x+1 for x in m]
A(f"  v_max3_f32 v21, v{m[0]}, v{m[1]}, v{m[2]}")
A(f"  v_max_f32 v21, v21, v{m[3]}")
for w in range(4):
    A(f"  v_sub_f32 v{m[w]}, v{m[w]}, v21")
    if w >= 1: A(f"  v_exp_f32 v{m[w-1]}, v{m[w-1]}")
A(f"  v_exp_f32 v{m[3]}, v{m[3]}")
A(f"  v_mul_f32 v22, v{m[0]}, v{l[0]}")
for w in range(1, 4): A(f"  v_fmac_f32 v22, v{m[w]}, v{l[w]}")
A("  v_rcp_f32 v23, v22")
A("  v_log_f32 v22, v22")
lgkm(0)
A(f"  v_mul_f32 v{KR+16}, v{m[0]}, v{KR}")
A(f"  v_mul_f32 v{KR+17}, v{m[0]}, v{KR+1}")
for w in range(1, 4):
    A(f"  v_fmac_f32 v{KR+16}, v{m[w]}, v{KR+2*w}")
    A(f"  v_fmac_f32 v{KR+17}, v{m[w]}, v{KR+2*w+1}")
A(f"  v_add_f32 v{KR+18}, v21, v22")
A(f"  v_mul_f32 v{KR+16}, v{KR+16}, v23")
A(f"  v_mul_f32 v{KR+17}, v{KR+17}, v23")
A(f"  v_add_u32 v{KR+19}, s36, v{KR+18}")
A(f"  v_add3_u32 v{KR+19}, v{KR+16}, v{KR+17}, v{KR+19}")
store2(f"global_store_dwordx4 v17, v[{KR+16}:{KR+19}], s[58:59]")
stamp(8)
PB = VP
PA = ["s[46:47]", "s[48:49]", "s[50:51]", "s[52:53]"]
for i in range(4): A(f"  global_load_dwordx4 v[{PB+4*i}:{PB+4*i+3}], v18, s[58:59] offset:{1024*i} sc1")
A(f"  v_mov_b32 v25, {L_HF}")
A("  ds_read_b32 v25, v25")
A("  ds_read_b32 v24, v9")
A("  s_waitcnt vmcnt(5)")
for p in range(2):
    for c in range(4):
        a = WO + 8*p + c; b = a + 4
        A(f"  v_perm_b32 v{WP+8*p+2*c}, v{b}, v{a}, s44")
        A(f"  v_perm_b32 v{WP+8*p+2*c+1}, v{b}, v{a}, s45")
for c in range(4):
    a = W2 + c; b = a + 4
    A(f"  v_perm_b32 v{WP+16+2*c}, v{b}, v{a}, s44")
    A(f"  v_perm_b32 v{WP+16+2*c+1}, v{b}, v{a}, s45")
def redrq(b):
    for c in range(4): A(f"  v_permlane32_swap_b32 v{b+c}, v{b+4+c}")
    for c in range(4): A(f"  v_add_f32 v{b+c}, v{b+c}, v{b+4+c}")
    A("  s_nop 0")
    for c in range(2): A(f"  v_permlane16_swap_b32 v{b+c}, v{b+2+c}")
    for c in range(2): A(f"  v_add_f32 v{b+c}, v{b+c}, v{b+2+c}")
def bpart():
    for c in range(8): A(f"  v_dot2c_f32_bf16 v{BA+c}, v24, v{WP+16+c}")
    A("  s_nop 2")
    redrq(BA)
    A(f"  v_mul_f32 v{BA}, v{BA}, v29")
    A(f"  v_mul_f32 v{BA+1}, v{BA+1}, v29")
A("  s_waitcnt lgkmcnt(0)")
A("  v_readfirstlane_b32 s56, v25")
for p in PA: A(f"  s_mov_b64 {p}, -1")
A("  s_mov_b32 s42, 0")
A("  s_cmp_eq_u32 s56, 0")
A("  s_cbranch_scc1 LBnoh")
bpart()
A("LBnoh:")
stamp(9)
if not PIPEB: A("  s_branch LBchk")
A("LBpoll:")
for i in range(4):
    A(f"  s_mov_b64 exec, {PA[i]}")
    if not PIPEB: A(f"  s_cbranch_execz LBs{i}")
    A(f"  global_load_dwordx4 v[{PB+4*i}:{PB+4*i+3}], v18, s[58:59] offset:{1024*i} sc1")
    A(f"LBs{i}:")
A("  s_mov_b64 exec, -1")
A("  s_add_u32 s42, s42, 1")
A("  s_cmp_eq_u32 s56, 0")
A("  s_cbranch_scc1 Lhtry")
A("LBchk:")
A(f"  s_waitcnt vmcnt({4 if PIPEB else 0})")
ls = [PB+4*i+2 for i in range(4)]
for i in range(4): A(f"  v_add3_u32 v{PB+16+i}, v{PB+4*i}, v{PB+4*i+1}, v{PB+4*i+2}")
A(f"  v_max3_f32 v21, v{ls[0]}, v{ls[1]}, v{ls[2]}")
for i in range(4): A(f"  v_sub_u32 v{PB+16+i}, v{PB+4*i+3}, v{PB+16+i}")
A(f"  v_max_f32 v21, v21, v{ls[3]}")
for i in range(4): A(f"  v_cmp_ne_u32 {PA[i]}, s36, v{PB+16+i}")
A("  v_max_f32_dpp v21, v21, v21 row_ror:2 row_mask:0xf bank_mask:0xf")
A(f"  s_or_b64 s[40:41], {PA[0]}, {PA[1]}")
A(f"  s_or_b64 vcc, {PA[2]}, {PA[3]}")
A("  v_max_f32_dpp v21, v21, v21 row_ror:4 row_mask:0xf bank_mask:0xf")
A(f"  s_or_b64 s[40:41], s[40:41], vcc")
A(f"  s_cbranch_scc0 LBgot")
A(f"  s_cmp_lt_u32 s42, {SPIN}")
A(f"  s_cbranch_scc1 LBpoll")
A("LBgot:")
stamp(10)
A("  v_max_f32_dpp v21, v21, v21 row_ror:8 row_mask:0xf bank_mask:0xf")
lw = [PB+16+i for i in range(4)]
for i in range(4):
    A(f"  v_sub_f32 v{lw[i]}, v{ls[i]}, v21")
    if i >= 1: A(f"  v_exp_f32 v{lw[i-1]}, v{lw[i-1]}")
A(f"  v_exp_f32 v{lw[3]}, v{lw[3]}")
ls = lw
A(f"  v_mul_f32 v22, v{ls[0]}, v{PB}")
A(f"  v_mul_f32 v23, v{ls[0]}, v{PB+1}")
A(f"  v_add_f32 v21, v{ls[0]}, v{ls[1]}")
for i in range(1, 4):
    if i >= 2: A(f"  v_add_f32 v21, v21, v{ls[i]}")
    A(f"  v_fmac_f32 v22, v{ls[i]}, v{PB+4*i}")
    A(f"  v_fmac_f32 v23, v{ls[i]}, v{PB+4*i+1}")
for r in (2, 4, 8):
    for x in (21, 22, 23):
        A(f"  v_add_f32_dpp v{x}, v{x}, v{x} row_ror:{r} row_mask:0xf bank_mask:0xf")
A("  v_rcp_f32 v21, v21")
A("  s_nop 0")
A("  v_mul_f32 v22, v22, v21")
A("  v_mul_f32 v23, v23, v21")
A("  v_cvt_pk_bf16_f32 v22, v22, v23")
A("  s_nop 1")
for p in range(2):
    for c in range(8):
        A(f"  v_dot2c_f32_bf16_dpp v{AA+c}, v22, v{WP+8*p+c} quad_perm:[{p},{p},{p},{p}] row_mask:0xf bank_mask:0xf")
A("  s_nop 2")
redrq(AA)
A("  s_cmp_eq_u32 s56, 0")
A("  s_cbranch_scc1 Lhlate")
A("Lhback:")
A(f"  v_fma_f32 v24, v{AA}, v28, v{BA}")
A(f"  v_fma_f32 v25, v{AA+1}, v28, v{BA+1}")
A("  v_add3_u32 v26, v24, v25, s36")
store2("global_store_dwordx4 v19, v[24:27], s[58:59]")
stamp(11)
if B3: A("  s_barrier")
stamp_store()
A("  s_endpgm")
A("Lhtry:")
A(f"  v_mov_b32 v25, {L_HF}")
A("  ds_read_b32 v25, v25")
A("  ds_read_b32 v24, v9")
A("  s_waitcnt lgkmcnt(0)")
A("  v_readfirstlane_b32 s56, v25")
A("  s_cmp_eq_u32 s56, 0")
A("  s_cbranch_scc1 LBchk")
bpart()
A("  s_branch LBchk")
A("Lhlate:")
A("  s_mov_b32 s42, 0")
A("Lhl2:")
A(f"  v_mov_b32 v25, {L_HF}")
A("  ds_read_b32 v25, v25")
A("  ds_read_b32 v24, v9")
A("  s_add_u32 s42, s42, 1")
A("  s_waitcnt lgkmcnt(0)")
A("  v_readfirstlane_b32 s56, v25")
A(f"  s_cmp_ge_u32 s42, {SPIN}")
A("  s_cbranch_scc1 Lhl3")
A("  s_cmp_eq_u32 s56, 0")
A("  s_cbranch_scc1 Lhl2")
A("Lhl3:")
bpart()
A("  s_branch Lhback")
if LAZYB:
    A("LQsb:")
    A("  s_mov_b32 exec_lo, 0xff")
    A("  s_mov_b32 exec_hi, 0xff")
    A(f"  global_store_dwordx4 v7, v[{AC}:{AC+3}], s[30:31] sc1")
    A("  s_mov_b64 exec, -1")
    A("  s_branch LQsbr")
for n, ins in store2.tail:
    A(f"Lslow{n}:")
    A(f"  {ins} sc1")
    A(f"  s_branch Lsd{n}")
A("Lend:")
A("  s_endpgm")
L += footer(248, 100)
open(sys.argv[1], "w").write("\n".join(L) + "\n")
```

```python
import sys, struct, math
from common import *

opts = {}
for o in (sys.argv[2].split(",") if len(sys.argv) > 2 else []):
    k, _, v = o.partition("=")
    opts[k] = v
STAMPS = "stamps" in opts
NT = "" if "nont" in opts else " nt"
NTW = "" if ("nont" in opts or "nontw" in opts) else " nt"
SLOW = "slow" in opts
NPA = int(opts.get("npa", 6))
W1G = int(opts.get("w1g", 4))
BX = "nobx" not in opts
PIPE = "nopipe" not in opts
PIPEB = "pipeb" in opts

def f32(x): return "0x%08x" % struct.unpack("<I", struct.pack("<f", x))[0]

QS, HS, C2, BS, C1, QB, ST = 0x10000, 0x20000, 0x8000, 0x40000, 0x140000, 0x290000, 0x400000
SLOWOFF = 0x800000
L_Q = 0; L_H = 1280; L_G = 1296; L_F = 1304; L_ML = 1344; L_C = 1472; L_HF = 1308; L_JUNK = 1600; L_O = 2304
LDS_BYTES = L_O + 4 * 2304
SPIN = 0x100000
REUSE = "noreuse" not in opts
TAG2 = 0x5bd1e990
SKEWL = "noskew" not in opts

L = header(256, 384, LDS_BYTES); A = L.append
def stamp(k):
    if STAMPS: A(f"  s_memrealtime s[{64+2*k}:{65+2*k}]")
def stamp_store():
    if not STAMPS: return
    A("  s_waitcnt lgkmcnt(0)")
    A("  s_mul_i32 s60, s2, 6")
    A("  s_add_u32 s60, s60, s34")
    A("  s_lshl_b32 s60, s60, 7")
    A(f"  s_add_u32 s60, s60, {ST}")
    A("  v_mov_b32 v4, s60")
    A("  s_mov_b64 exec, 1")
    for k in range(16):
        A(f"  v_mov_b32 v6, s{64+2*k}")
        A(f"  v_mov_b32 v7, s{65+2*k}")
        A(f"  global_store_dwordx2 v4, v[6:7], s[30:31] offset:{8*k}")
        A("  s_nop 1")
def lgkm(n):
    A(f"  s_waitcnt lgkmcnt({0 if STAMPS else n})")
def tag_compute():
    A("  s_and_b32 s36, s35, 0xfffffff8")
    A("  s_add_u32 s36, s36, 0x9e3779b8")
def base58():
    A('  s_cmp_eq_u32 s57, 0')
    A(f'  s_cselect_b32 s58, {SLOWOFF}, 0')
    A('  s_add_u32 s58, s30, s58')
    A('  s_addc_u32 s59, s31, 0')
def store2(ins):
    n = store2.n; store2.n += 1
    A("  s_cmp_eq_u32 s57, 0")
    A(f"  s_cbranch_scc1 Lslow{n}")
    A(f"  {ins}{' nt' if 'stnt' in opts else ''}")
    A(f"Lsd{n}:")
    store2.tail.append((n, ins))
store2.n = 0; store2.tail = []
def red8(regs, tmp, op="add"):
    for r in regs: A(f"  v_{op}_f32_dpp v{r}, v{r}, v{r} row_ror:8 row_mask:0xf bank_mask:0xf")
    for sw in ("32", "16"):
        for r, t in zip(regs, tmp): A(f"  v_mov_b32 v{t}, v{r}")
        A(f"  s_nop {max(0, 2 - len(regs))}")
        for r, t in zip(regs, tmp): A(f"  v_permlane{sw}_swap_b32 v{r}, v{t}")
        for r, t in zip(regs, tmp): A(f"  v_{op}_f32 v{r}, v{r}, v{t}")
def mpoll(name, loads, checks, pend, cnt="s42"):
    n = len(loads)
    for p in pend: A(f"  s_mov_b64 {p}, -1")
    A(f"  s_mov_b32 {cnt}, 0")
    if PIPE:
        for ld in loads: A(f"  {ld}")
    A(f"L{name}poll:")
    for i, ld in enumerate(loads):
        A(f"  s_mov_b64 exec, {pend[i]}")
        if not PIPE: A(f"  s_cbranch_execz L{name}s{i}")
        A(f"  {ld}")
        A(f"L{name}s{i}:")
    A("  s_mov_b64 exec, -1")
    A(f"  s_add_u32 {cnt}, {cnt}, 1")
    A(f"  s_waitcnt vmcnt({n if PIPE else 0})")
    checks()
    A(f"  s_or_b64 s[40:41], {pend[0]}, {pend[1]}")
    A(f"  s_or_b64 vcc, {pend[2]}, {pend[3]}")
    A(f"  s_or_b64 s[40:41], s[40:41], vcc")
    A(f"  s_cbranch_scc0 L{name}got")
    A(f"  s_cmp_lt_u32 {cnt}, {SPIN}")
    A(f"  s_cbranch_scc1 L{name}poll")
    A(f"L{name}got:")

DR = 32; XM, AC = 96, 128
if STAMPS: A("  s_memrealtime s[64:65]")
A("  s_load_dwordx16 s[4:19], s[0:1], 0")
A("  s_load_dwordx8 s[20:27], s[0:1], 64")
A("  s_load_dwordx4 s[28:31], s[0:1], 96")
A("  v_lshrrev_b32 v1, 6, v0")
A("  v_and_b32 v2, 63, v0")
A("  s_cmp_ge_u32 s2, 256")
A("  v_readfirstlane_b32 s34, v1")
A("  s_cbranch_scc1 Lend")
A("  s_and_b32 s32, s2, 7")
A("  s_lshr_b32 s33, s2, 3")
A("  s_cmp_ge_u32 s34, 2")
A("  s_cbranch_scc1 LA")
A("  s_lshl_b32 s37, s32, 10")
A("  s_lshr_b32 s38, s33, 2")
A("  s_lshl_b32 s38, s38, 7")
A("  s_add_u32 s37, s37, s38")
A("  s_and_b32 s39, s33, 3")
A("  s_lshl_b32 s38, s39, 20")
A("  s_add_u32 s37, s37, s38")
A("  s_lshl_b32 s39, s39, 8")
A(f"  s_mul_i32 s38, s32, {(512//W1G)*3584}")
A("  s_lshl_b32 s40, s33, 7")
A("  s_add_u32 s38, s38, s40")
A(f"  s_lshl_b32 s40, s32, {7 if W1G == 8 else 8}")
A(f"  s_mov_b32 s52, {28672 if W1G == 8 else 57344}")
A("  s_movk_i32 s55, 3584")
A("  s_cmp_eq_u32 s34, 0")
A("  s_cselect_b32 s37, s37, s38")
A("  s_cselect_b32 s39, s39, s40")
A("  s_cselect_b32 s52, 0x20000, s52")
A("  s_cselect_b32 s55, 0x2000, s55")
if W1G == 8: A("  s_cselect_b32 s53, 5, 4")
A("  v_lshrrev_b32 v4, 3, v2")
A("  v_and_b32 v3, 7, v2")
A("  v_mul_u32_u24 v5, s52, v4")
A("  v_lshlrev_b32 v6, 4, v3")
A("  v_add3_u32 v5, v5, v6, s37")
if W1G == 8:
    A("  v_lshlrev_b32 v6, s53, v4")
    A("  v_add_u32 v6, s39, v6")
else:
    A("  v_lshl_add_u32 v6, v4, 5, s39")
A("  s_cbranch_scc1 Lnpf")
A("  s_getpc_b64 s[40:41]")
A("Lpc:")
A("  v_lshlrev_b32 v7, 7, v2")
A("  v_min_u32 v7, Lend-Lpc, v7")
A("  global_load_dword v27, v7, s[40:41]")
A("  s_cmp_ge_u32 s33, 28")
A("  s_cbranch_scc1 LMskip")
if W1G == 4:
    A("  s_cmp_ge_u32 s32, 4")
    A("  s_cbranch_scc1 LMskip")
A("  s_cmp_eq_u32 s34, 0")
A("Lnpf:")
A("  s_setprio 3")
A("  s_waitcnt lgkmcnt(0)")
stamp(1)
A("  s_cselect_b64 s[40:41], s[10:11], s[16:17]")
A("  global_load_dwordx4 v[8:11], v6, s[4:5]")
if W1G == 8: A("  s_cbranch_scc0 Lgo")
A("  global_load_dwordx4 v[12:15], v6, s[4:5] offset:16")
A("Lgo:")
for i in range(16):
    A(f"  global_load_dwordx4 v[{DR+4*i}:{DR+4*i+3}], v5, s[40:41]{NTW}")
    if i < 15: A(f"  v_add_u32 v5, s55, v5")
    if i == 7 and W1G == 8: A("  s_cbranch_scc0 LM")
if W1G == 4: A("  s_cbranch_scc0 LM")

B0K = int(opts.get("b0k", -1))
if B0K < 0: A("  s_barrier")
A("  s_load_dword s35, s[30:31], 0")
A("  s_getreg_b32 s39, hwreg(HW_REG_XCC_ID)")
stamp(2)
for c in range(8): A(f"  v_mov_b32 v{AC+c}, 0")
A("  s_and_b32 s39, s39, 7")
A("  s_lshl_b32 s37, s32, 13")
A(f"  s_add_u32 s37, s37, {QS}")
A("  s_lshl_b32 s38, s33, 8")
A("  s_add_u32 s38, s38, s37")
A("  v_lshrrev_b32 v5, 5, v2")
A("  v_lshlrev_b32 v5, 7, v5")
A("  v_lshl_add_u32 v5, v3, 4, v5")
A("  v_add_u32 v5, s38, v5")
A(f"  v_add_u32 v7, {QB-QS}, v5")
A("  v_lshlrev_b32 v6, 10, v4")
A("  v_lshl_add_u32 v6, v3, 4, v6")
A("  v_add_u32 v6, s37, v6")
A("  v_lshrrev_b32 v140, 4, v2")
A("  v_mul_u32_u24 v140, 320, v140")
A("  v_and_b32 v141, 15, v2")
A("  v_lshl_add_u32 v140, v141, 4, v140")
A("  s_lshl_b32 s37, s32, 17")
A("  s_lshl_b32 s38, s33, 12")
A("  s_add_u32 s37, s37, s38")
A(f"  s_add_u32 s37, s37, {C1}")
A("  v_lshl_add_u32 v141, v2, 4, s37")
if REUSE:
    A("  s_lshl_b32 s37, s32, 17")
    A("  s_lshl_b32 s38, s33, 7")
    A("  s_add_u32 s37, s37, s38")
    A(f"  s_add_u32 s37, s37, {BS}")
    A("  v_lshlrev_b32 v152, 12, v4")
    A("  v_lshl_add_u32 v152, v3, 4, v152")
    A("  v_add_u32 v152, s37, v152")
    for i in range(1, 4): A(f"  v_add_u32 v{152+i}, {0x8000*i}, v152")
    if SKEWL:
        A("  s_lshl_b32 s37, s32, 17")
        A(f"  s_add_u32 s37, s37, {BS}")
        for i in range(4):
            A(f"  v_add_u32 v156, {8*i}, v4")
            A("  v_add_u32 v157, s33, v156")
            A("  v_and_b32 v157, 31, v157")
            A("  v_lshlrev_b32 v156, 12, v156")
            A("  v_lshl_add_u32 v156, v157, 7, v156")
            A("  v_lshl_add_u32 v156, v3, 4, v156")
            A(f"  v_add_u32 v{152+i}, s37, v156")
A("  s_lshl_b32 s37, s33, 10")
A("  s_lshl_b32 s38, s32, 7")
A("  s_add_u32 s37, s37, s38")
A(f"  s_add_u32 s37, s37, {C2}")
A("  v_lshl_add_u32 v143, v2, 4, s37")
A("  v_lshlrev_b32 v142, 4, v3")
A(f"  v_add_u32 v142, {L_C}, v142")
A(f"  v_mov_b32 v144, {L_F}")
A("  s_mov_b32 s44, 0x07060503")
A("  s_mov_b32 s45, 0x07060502")
A("  s_mov_b32 s46, 0x07060501")
A("  s_mov_b32 s47, 0x04000c0c")
A("  s_mov_b32 s48, 0x0706000c")
A("  s_waitcnt vmcnt(16)")
def xmasks(n):
    for k in range(n):
        A(f"  v_and_b32 v{XM+4*k}, 0xffff, v{8+k}")
        A(f"  v_lshlrev_b32 v{XM+1+4*k}, 16, v{8+k}")
        A(f"  v_lshrrev_b32 v{XM+2+4*k}, 16, v{8+k}")
        A(f"  v_and_b32 v{XM+3+4*k}, 0xffff0000, v{8+k}")
def dots(n, extra, bar=-1):
    for i in range(n):
        A(f"  s_waitcnt vmcnt({n-1-i+extra})")
        if i == bar: A("  s_barrier")
        for c in range(4):
            A(f"  v_dot2c_f32_bf16 v{AC+2*c}, v{DR+4*i+c}, v{XM+2*i}")
            A(f"  v_dot2c_f32_bf16 v{AC+1+2*c}, v{DR+4*i+c}, v{XM+1+2*i}")
xmasks(8)
dots(16, 0, B0K)
stamp(4)
A("  s_waitcnt lgkmcnt(0)")
tag_compute()
A("  s_or_b32 s43, s36, s39")
for c in range(4): A(f"  v_permlane32_swap_b32 v{AC+c}, v{AC+4+c}")
for c in range(4): A(f"  v_add_f32 v{AC+c}, v{AC+c}, v{AC+4+c}")
for c in range(4): A(f"  v_add_f32_dpp v{AC+c}, v{AC+c}, v{AC+c} row_ror:8 row_mask:0xf bank_mask:0xf")
for c in range(4): A(f"  v_mov_b32 v{AC+4+c}, v{AC+c}")
for c in range(4): A(f"  v_permlane16_swap_b32 v{AC+c}, v{AC+4+c}")
for c in range(4): A(f"  v_add_f32 v{AC+c}, v{AC+c}, v{AC+4+c}")
for c in range(3): A(f"  v_perm_b32 v{AC+c}, v{AC+c}, v{AC+3}, s{44+c}")
A(f"  v_add3_u32 v{AC+3}, v{AC}, v{AC+1}, v{AC+2}")
A(f"  v_add_u32 v{AC+3}, s43, v{AC+3}")
A("  s_mov_b32 exec_lo, 0xff")
A("  s_mov_b32 exec_hi, 0xff")
A(f"  global_store_dwordx4 v5, v[{AC}:{AC+3}], s[30:31]")
LAZYB = "nolazy" not in opts
if not LAZYB: A(f"  global_store_dwordx4 v7, v[{AC}:{AC+3}], s[30:31] sc1")
A("  s_mov_b64 exec, -1")
stamp(5)
if BX: A("  s_barrier")
stamp(14)
PQ8 = [f"s[{4+2*i}:{5+2*i}]" for i in range(8)]
for p in PQ8: A(f"  s_mov_b64 {p}, -1")
A("  s_mov_b32 s42, 0")
SU = 64
BY = BX and "noby" not in opts
if BY:
    for gI in range(8):
        A(f"  global_load_dwordx4 v[{DR+gI*4}:{DR+gI*4+3}], v6, s[30:31] offset:{(gI>>1)*256+(gI&1)*128} sc1")
    A("  s_barrier")
    A("  s_branch LQiss")
A("LQpoll:")
A(f"  s_cmp_lt_u32 s42, {NPA}")
A("  s_cbranch_scc1 LQpa")
A(f"  v_xor_b32 v6, {QB^QS}, v6")
A("LQpa:")
for gI in range(8):
    ks, hf = gI >> 1, gI & 1
    r = DR + gI*4
    A(f"  s_mov_b64 exec, {PQ8[gI]}")
    A(f"  global_load_dwordx4 v[{r}:{r+3}], v6, s[30:31] offset:{ks*256+hf*128} sc1")
A("  s_mov_b64 exec, -1")
A("LQiss:")
A("  s_add_u32 s42, s42, 1")
stamp(3)
for gI in range(8):
    ks, hf = gI >> 1, gI & 1
    r = DR + gI*4
    A(f"  s_waitcnt vmcnt({7-gI})")
    A(f"  v_add3_u32 v{8+gI}, v{r}, v{r+1}, v{r+2}")
    A(f"  v_perm_b32 v{72+gI}, v{r}, v{r+1}, s47")
    A(f"  v_sub_u32 v{8+gI}, v{r+3}, v{8+gI}")
    A(f"  v_perm_b32 v{72+gI}, v{72+gI}, v{r+2}, s48")
    A(f"  v_xor_b32 v{8+gI}, s43, v{8+gI}")
    src = [r, r+1, r+2, 72+gI]
    if ks == 1:
        p = [r-8, r-7, r-6, 72+gI-2]
        for c in range(4): A(f"  v_add_f32 v{SU+4*hf+c}, v{p[c]}, v{src[c]}")
    elif ks >= 2:
        for c in range(4): A(f"  v_add_f32 v{SU+4*hf+c}, v{SU+4*hf+c}, v{src[c]}")
    A(f"  v_cmp_le_u32 {PQ8[gI]}, 8, v{8+gI}")
    if gI == 6:
        for c in range(2): A(f"  v_cvt_pk_bf16_f32 v{80+c}, v{SU+2*c}, v{SU+2*c+1}")
for c in range(2, 4): A(f"  v_cvt_pk_bf16_f32 v{80+c}, v{SU+2*c}, v{SU+2*c+1}")
A(f"  ds_write_b128 v140, v[80:83]")
A(f"  s_or_b64 s[40:41], {PQ8[0]}, {PQ8[1]}")
A(f"  s_or_b64 s[50:51], {PQ8[2]}, {PQ8[3]}")
A(f"  s_or_b64 s[52:53], {PQ8[4]}, {PQ8[5]}")
A(f"  s_or_b64 vcc, {PQ8[6]}, {PQ8[7]}")
A("  s_or_b64 s[40:41], s[40:41], s[50:51]")
A("  s_or_b64 vcc, vcc, s[52:53]")
A("  s_or_b64 s[40:41], s[40:41], vcc")
A("  s_cbranch_scc0 LQgot")
if LAZYB:
    A(f"  s_cmp_lg_u32 s42, {int(opts.get('lazyr', 2))}")
    A("  s_cbranch_scc1 LQnb")
    A("  s_mov_b32 exec_lo, 0xff")
    A("  s_mov_b32 exec_hi, 0xff")
    A(f"  global_store_dwordx4 v7, v[{AC}:{AC+3}], s[30:31] sc1")
    A("LQnb:")
A(f"  s_cmp_lt_u32 s42, {SPIN}")
A("  s_cbranch_scc1 LQpoll")
A("LQgot:")
A("  v_or3_b32 v8, v8, v9, v10")
A("  v_or3_b32 v11, v11, v12, v13")
A("  v_or3_b32 v8, v8, v14, v15")
A("  v_or_b32 v8, v8, v11")
A("  v_cmp_ne_u32 vcc, 0, v8")
A("  s_cmp_eq_u64 vcc, 0")
A("  s_cselect_b32 s57, 1, 0")
if SLOW: A("  s_mov_b32 s57, 0")
if LAZYB:
    A("  s_cmp_eq_u32 s57, 0")
    A("  s_cbranch_scc1 LQsb")
    A("LQsbr:")
A("  v_mov_b32 v4, s57")
A("  ds_write_b32 v144, v4")
if STAMPS: A("  s_mov_b32 s90, s42"); A("  s_mov_b32 s91, 0")
stamp(6)
A("  s_waitcnt lgkmcnt(0)")
A("  s_barrier")
base58()
A("  s_barrier")
stamp(7)
if "nob3" not in opts: A("  s_barrier")
PQ = ["s[44:45]", "s[46:47]", "s[48:49]", "s[50:51]"]
def chkF():
    for i in range(4): A(f"  v_add3_u32 v{24+i}, v{8+4*i}, v{9+4*i}, {'s39' if REUSE else 's36'}")
    A("  v_add_f32 v28, v8, v12")
    A("  v_add_f32 v29, v9, v13")
    for i in range(4): A(f"  v_cmp_ne_u32 {PQ[i]}, v{24+i}, v{10+4*i}")
    A("  v_add_f32 v30, v16, v20")
    A("  v_add_f32 v31, v17, v21")
    A("  v_add_f32 v28, v28, v30")
    A("  v_add_f32 v29, v29, v31")
if REUSE:
    A(f"  s_add_u32 s39, s36, {TAG2}")
    mpoll("F", [f"global_load_dwordx3 v[{8+4*i}:{10+4*i}], v{152+i}, s[58:59] sc1" for i in range(4)], chkF, PQ)
else:
    mpoll("F", [f"global_load_dwordx3 v[{8+4*i}:{10+4*i}], v141, s[58:59] offset:{1024*i} sc1" for i in range(4)], chkF, PQ)
stamp(8)
red8([28, 29], [36, 37])
A("  v_add3_u32 v30, v28, v29, s36")
A("  s_mov_b64 exec, 0xff")
A("  global_store_dwordx4 v143, v[28:31], s[30:31] sc1")
A("  ds_write_b96 v142, v[28:30]")
stamp(9)
stamp(11)
stamp_store()
A("  s_endpgm")

def gate_loads():
    A("  v_lshlrev_b32 v6, 4, v2")
    A("  global_load_dwordx4 v[16:19], v6, s[4:5]")
    A("  global_load_dwordx4 v[20:23], v6, s[24:25]")
    A("  s_lshl_b32 s37, s33, 5")
    A("  v_lshl_add_u32 v144, v3, 2, s37")
    A("  global_load_dword v145, v144, s[22:23]")
def gate_compute():
    for k in range(4):
        A(f"  v_lshlrev_b32 v{80+2*k}, 16, v{16+k}")
        A(f"  v_and_b32 v{81+2*k}, 0xffff0000, v{16+k}")
        A(f"  v_lshlrev_b32 v{88+2*k}, 16, v{20+k}")
        A(f"  v_and_b32 v{89+2*k}, 0xffff0000, v{20+k}")
    for k in range(8): A(f"  v_mul_f32 v{80+k}, v{80+k}, v{88+k}")
    for k in range(4): A(f"  v_cvt_pk_bf16_f32 v{88+k}, v{80+2*k}, v{81+2*k}")
    for k in range(4):
        A(f"  v_lshlrev_b32 v{80+2*k}, 16, v{88+k}")
        A(f"  v_and_b32 v{81+2*k}, 0xffff0000, v{88+k}")
    for k in range(4): A(f"  v_add_f32 v{80+2*k}, v{80+2*k}, v{81+2*k}")
    A("  v_add_f32 v80, v80, v82")
    A("  v_add_f32 v84, v84, v86")
    A("  v_add_f32 v80, v80, v84")
    for sw in ("32", "16"):
        A("  v_mov_b32 v81, v80")
        A("  s_nop 1")
        A(f"  v_permlane{sw}_swap_b32 v80, v81")
        A("  v_add_f32 v80, v80, v81")
    for r in (8, 4, 2, 1):
        A("  s_nop 1")
        A(f"  v_add_f32_dpp v80, v80, v80 row_ror:{r} row_mask:0xf bank_mask:0xf")
    A("  v_cvt_pk_bf16_f32 v80, v80, v80")
    A("  v_lshlrev_b32 v80, 16, v80")
    A(f"  v_mul_f32 v80, {f32(-math.log2(math.e))}, v80")
    A("  v_exp_f32 v80, v80")
    A("  s_nop 0")
    A("  v_add_f32 v80, 1.0, v80")
    A("  v_rcp_f32 v80, v80")
    A("  s_nop 0")
    A("  v_cvt_pk_bf16_f32 v80, v80, v80")
    A("  v_lshlrev_b32 v80, 16, v80")
    A("  v_sub_f32 v81, 1.0, v80")
    A("  v_cvt_pk_bf16_f32 v81, v81, v81")
    A("  v_lshlrev_b32 v81, 16, v81")
    A(f"  v_mov_b32 v82, {L_G}")
    A("  ds_write_b64 v82, v[80:81]")
A("LMskip:")
A("  s_waitcnt lgkmcnt(0)")
gate_loads()
A("  s_barrier")
A("  s_load_dword s35, s[30:31], 0")
A("  s_waitcnt vmcnt(0) lgkmcnt(0)")
tag_compute()
A("  s_mov_b32 s56, 0")
A("  s_branch LMgate")
A("LM:")
gate_loads()
A("  s_barrier")
A("  s_load_dword s35, s[30:31], 0")
stamp(2)
NM = 8 if W1G == 8 else 16
for c in range(8): A(f"  v_mov_b32 v{AC+c}, 0")
A("  s_lshl_b32 s37, s33, 12")
A(f"  s_add_u32 s37, s37, {HS}")
A("  s_lshl_b32 s38, s32, 9")
A("  s_add_u32 s38, s38, s37")
A("  v_lshl_add_u32 v5, v3, 3, v4")
A("  v_lshl_add_u32 v5, v5, 3, s38")
A(f"  s_waitcnt vmcnt({NM+3})")
xmasks(NM // 2)
dots(NM, 3)
stamp(3)
A("  s_waitcnt lgkmcnt(0)")
tag_compute()
for c in range(4): A(f"  v_permlane32_swap_b32 v{AC+c}, v{AC+4+c}")
for c in range(4): A(f"  v_add_f32 v{AC+c}, v{AC+c}, v{AC+4+c}")
A("  s_nop 0")
for c in range(2): A(f"  v_permlane16_swap_b32 v{AC+c}, v{AC+2+c}")
for c in range(2): A(f"  v_add_f32 v{AC+c}, v{AC+c}, v{AC+2+c}")
A("  s_nop 0")
A(f"  v_add_f32_dpp v{AC}, v{AC}, v{AC} row_ror:8 row_mask:0xf bank_mask:0x3")
A(f"  v_add_f32_dpp v{AC}, v{AC+1}, v{AC+1} row_ror:8 row_mask:0xf bank_mask:0xc")
A(f"  v_xor_b32 v{AC+1}, s36, v{AC}")
HE = "hlate" not in opts
if HE:
    A(f"  global_store_dwordx2 v5, v[{AC}:{AC+1}], s[30:31] sc1")
    A("  s_waitcnt vmcnt(1)")
else:
    A("  s_waitcnt vmcnt(0)")
    A("  s_mov_b32 s56, 1")
A("LMgate:")
gate_compute()
A("  s_min_u32 s49, s33, 27")
A("  s_lshl_b32 s37, s49, 12")
A("  s_lshl_b32 s38, s32, 6")
A("  s_add_u32 s38, s38, s37")
A(f"  s_add_u32 s38, s38, {HS}")
A(f"  v_and_b32 v146, {W1G-1}, v4")
A("  v_lshlrev_b32 v146, 9, v146")
A("  v_lshl_add_u32 v146, v3, 3, v146")
A("  v_add_u32 v146, s38, v146")
A("  s_lshl_b32 s37, s49, 7")
A("  s_lshl_b32 s38, s32, 4")
A("  s_add_u32 s37, s37, s38")
A("  v_lshl_add_u32 v147, v3, 1, s37")
A("  v_lshlrev_b32 v148, 1, v3")
A(f"  v_add_u32 v148, {L_H}, v148")
A("  s_lshl_b32 s37, s32, 17")
A("  s_lshl_b32 s38, s33, 12")
A("  s_add_u32 s37, s37, s38")
A(f"  s_add_u32 s37, s37, {BS}")
A("  v_lshl_add_u32 v8, v2, 4, s37")
A(f"  v_add_u32 v11, {C1-BS}, v8")
A(f"  v_mov_b32 v152, {L_HF}")
A("  v_mov_b32 v153, 0")
A("  ds_write_b32 v152, v153")
A("  global_load_ushort v149, v147, s[18:19]")
if BX: A("  s_barrier")
if not HE:
    A("  s_cmp_eq_u32 s56, 0")
    A("  s_cbranch_scc1 LMns")
    A(f"  global_store_dwordx2 v5, v[{AC}:{AC+1}], s[30:31] sc1")
    A("LMns:")
MPRE = "mpre" in opts
if BY and not MPRE: A("  s_barrier")
A("  global_load_dwordx2 v[150:151], v146, s[30:31] sc1")
for i in range(4): A(f"  global_load_dwordx4 v[{32+4*i}:{35+4*i}], v8, s[30:31] offset:{1024*i} sc1")
C1E = "c1late" not in opts and not REUSE
if C1E:
    for i in range(4): A(f"  global_load_dwordx4 v[{48+4*i}:{51+4*i}], v11, s[30:31] offset:{1024*i} sc1")
if BY and MPRE: A("  s_barrier")
A("  s_lshl_b32 s37, s33, 10")
A(f"  s_add_u32 s37, s37, {C2}")
A("  v_lshl_add_u32 v142, v2, 4, s37")
A("  v_lshlrev_b32 v143, 4, v3")
A(f"  v_add_u32 v143, {L_C}, v143")
A("  s_lshl_b32 s37, s32, 3")
A("  s_lshl_b64 s[46:47], 0xff, s37")
A("  v_lshlrev_b32 v84, 16, v145")
A("  v_and_b32 v85, 0xffff0000, v145")
A("  v_mul_f32 v84, v84, v81")
A("  v_mul_f32 v85, v85, v81")
A("  v_mov_b32 v12, 0")
A("  v_mov_b32 v13, 0")
A("  v_mov_b32 v14, 1")
A("  ds_write_b96 v143, v[12:14]")
A("  s_waitcnt lgkmcnt(0)")
stamp(4)
A("  s_barrier")
if not C1E and not REUSE:
    for i in range(4): A(f"  global_load_dwordx4 v[{48+4*i}:{51+4*i}], v11, s[30:31] offset:{1024*i} sc1")
A("  s_barrier")
A("  s_mov_b32 s42, 0")
A(f"  s_waitcnt vmcnt({4 if REUSE else 8})")
A("  s_branch LHchk")
A("LHpoll:")
A("  global_load_dwordx2 v[150:151], v146, s[30:31] sc1")
A("  s_add_u32 s42, s42, 1")
A("  s_waitcnt vmcnt(0)")
A("LHchk:")
A("  v_xor_b32 v9, v150, v151")
A("  v_cmp_ne_u32 vcc, s36, v9")
A("  s_cbranch_vccz LHgot")
A(f"  s_cmp_lt_u32 s42, {SPIN}")
A("  s_cbranch_scc1 LHpoll")
A("LHgot:")
A("  v_mov_b32 v8, v150")
A("  s_cmp_lt_u32 s33, 28")
A("  s_cselect_b32 s40, -1, 0")
if W1G == 8:
    red8([8], [9])
else:
    A("  v_add_f32_dpp v8, v8, v8 row_ror:8 row_mask:0xf bank_mask:0xf")
    A("  v_mov_b32 v9, v8")
    A("  s_nop 1")
    A("  v_permlane16_swap_b32 v8, v9")
    A("  v_add_f32 v8, v8, v9")
A("  v_cvt_pk_bf16_f32 v8, v8, v8")
A("  v_lshlrev_b32 v149, 16, v149")
A("  v_lshlrev_b32 v8, 16, v8")
A("  v_add_f32 v8, v8, v149")
A("  v_cvt_pk_bf16_f32 v8, v8, v8")
A("  v_lshlrev_b32 v8, 16, v8")
k1 = -2.0 * math.log2(math.e) * math.sqrt(2.0 / math.pi)
k2 = k1 * 0.044715
A(f"  s_mov_b32 s41, {f32(k2)}")
A(f"  v_mov_b32 v10, {f32(k1)}")
A("  v_mul_f32 v9, v8, v8")
A("  v_fma_f32 v9, v9, s41, v10")
A("  v_mul_f32 v9, v9, v8")
A("  v_exp_f32 v9, v9")
A("  s_nop 0")
A("  v_add_f32 v9, 1.0, v9")
A("  v_rcp_f32 v9, v9")
A("  s_nop 0")
A("  v_mul_f32 v8, v8, v9")
A("  s_nop 1")
A("  v_mov_b32_dpp v9, v8 quad_perm:[1,0,3,2] row_mask:0xf bank_mask:0xf")
A("  v_cvt_pk_bf16_f32 v8, v8, v9")
A("  v_and_b32 v8, s40, v8")
A("  s_mov_b64 exec, 0x55")
A("  ds_write_b32 v148, v8")
A("  s_mov_b64 exec, -1")
A("  v_mov_b32 v153, 1")
A("  ds_write_b32 v152, v153")
stamp(12)
if STAMPS: A("  s_mov_b32 s90, s42"); A("  s_mov_b32 s91, 0")
B3 = "nob3" not in opts
A("  s_and_b32 s37, s33, 7")
A("  s_cmp_lg_u32 s37, s32")
if B3:
    A("  s_cbranch_scc1 LMnf")
    A("  global_load_dwordx3 v[12:14], v142, s[30:31] sc1")
    A("LMnf:")
    A("  s_barrier")
A("  s_cbranch_scc1 LMend")
A("  s_mov_b64 s[44:45], -1")
A("  s_mov_b32 s42, 0")
if PIPE:
    A("  s_andn2_b64 exec, s[44:45], s[46:47]")
    A("  global_load_dwordx3 v[12:14], v142, s[30:31] sc1")
A("LGpoll:")
A("  s_andn2_b64 exec, s[44:45], s[46:47]")
if not PIPE: A("  s_cbranch_execz LGs0")
A("  global_load_dwordx3 v[12:14], v142, s[30:31] sc1")
A("LGs0:")
A("  s_and_b64 exec, s[44:45], s[46:47]")
A("  ds_read_b96 v[12:14], v143")
A("  s_mov_b64 exec, -1")
A("  s_add_u32 s42, s42, 1")
A(f"  s_waitcnt vmcnt({1 if PIPE else 0}) lgkmcnt(0)")
A("  v_add3_u32 v16, v12, v13, s36")
A("  v_mov_b32 v18, v12")
A("  v_mov_b32 v19, v13")
A("  v_cmp_ne_u32 s[44:45], v16, v14")
A("  s_cmp_lg_u64 s[44:45], 0")
A("  s_cbranch_scc0 LGgot")
A(f"  s_cmp_lt_u32 s42, {SPIN}")
A("  s_cbranch_scc1 LGpoll")
A("LGgot:")
stamp(10)
red8([18, 19], [10, 11])
A("  v_add_f32 v18, v18, v84")
A("  v_add_f32 v19, v19, v85")
A("  v_cvt_pk_bf16_f32 v8, v18, v19")
A("  s_mov_b64 exec, 0xff")
A("  global_store_dword v144, v8, s[26:27]")
A("  s_cmp_lg_u32 s2, 0")
A("  s_cbranch_scc1 LMend")
A("  s_mov_b64 exec, 1")
A("  v_mov_b32 v3, 0")
A("  v_mov_b32 v9, s36")
A("  global_store_dword v3, v9, s[30:31]")
A("LMend:")
stamp(11)
stamp_store()
A("  s_endpgm")

KR, VR, VP, WO, W2, QR, PS, SR, AO, AL, ONE, WP = 32, 64, 96, 128, 144, 152, 168, 184, 192, 200, 204, 208
for _ in range(int(opts.get("pad", 0))): A("  s_nop 0")
A("LA:")
A("  s_sub_u32 s43, s34, 2")
A("  s_lshl_b32 s54, s32, 24")
A("  s_lshl_b32 s38, s33, 15")
A("  s_add_u32 s54, s54, s38")
A("  s_lshl_b32 s38, s43, 13")
A("  s_add_u32 s54, s54, s38")
A(f"  s_add_u32 s54, s54, {61440*256}")
A("  v_and_b32 v3, 15, v2")
A("  v_lshrrev_b32 v4, 4, v2")
A("  v_lshlrev_b32 v9, 4, v3")
A("  s_lshl_b32 s37, s32, 19")
A("  s_lshl_b32 s38, s33, 14")
A("  s_add_u32 s37, s37, s38")
A("  s_lshl_b32 s38, s33, 16")
A("  s_lshl_b32 s39, s32, 13")
A("  s_add_u32 s38, s38, s39")
A("  s_lshl_b32 s39, s43, 8")
A("  s_cmp_lt_u32 s33, 28")
A("  s_cselect_b32 s38, s38, s37")
A("  v_lshl_add_u32 v10, v4, 12, v9")
A("  v_lshl_add_u32 v11, v4, 11, v9")
A("  v_add3_u32 v10, v10, s37, v1" if False else "  s_add_u32 s37, s37, s39")
A("  s_add_u32 s38, s38, s39")
A("  v_add_u32 v10, s37, v10")
A("  v_add_u32 v11, s38, v11")
A("  v_lshl_add_u32 v7, v4, 10, v9")
A("  v_add_u32 v7, s54, v7")
A("  v_add_u32 v8, 0x1000, v7")
A("  v_lshlrev_b32 v5, 8, v3")
A("  v_lshl_add_u32 v5, v4, 4, v5")
A("  v_add_u32 v5, s54, v5")
A("  v_add_u32 v6, 0x1000, v5")
A("  s_cmp_lt_u32 s33, 28")
A("  s_waitcnt lgkmcnt(0)")
A("  s_cselect_b64 s[20:21], s[20:21], s[12:13]")
A("  s_barrier")
stamp(1)
KTS = "kts" in opts
vk = [f"  global_load_dwordx4 v[{VR+(t*4+rr)*4}:{VR+(t*4+rr)*4+3}], v{7+t}, s[8:9] offset:{256*rr}{NT}" for t in range(2) for rr in range(4)]
vk += [f"  global_load_dwordx4 v[{KR+(t*4+s_)*4}:{KR+(t*4+s_)*4+3}], v{5+t}, s[6:7] offset:{64*s_}{NT}" for s_ in range(4) for t in range(2)]
_A = A
setup = []
A = setup.append
A("  s_load_dword s35, s[30:31], 0")
for i in range(16): A(f"  v_mov_b32 v{PS+i}, 0")
for i in range(4): A(f"  v_mov_b32 v{ONE+i}, 0x3f803f80")
A("  s_mov_b32 s44, 0x05040100")
A("  s_mov_b32 s45, 0x07060302")
for a in range(4):
    A(f"  s_mov_b32 s{46+2*a}, 0x{(0x000f000f << (4*a)):08x}")
    A(f"  s_mov_b32 s{47+2*a}, 0x{(0x000f000f << (4*a)):08x}")
A("  v_and_b32 v12, 3, v2")
A("  v_mul_u32_u24 v12, 320, v12")
A("  v_lshl_add_u32 v12, v4, 4, v12")
A("  s_mul_i32 s37, s43, 2304")
A(f"  s_add_u32 s37, s37, {L_O}")
A("  v_mul_u32_u24 v13, 544, v4")
A("  v_lshl_add_u32 v13, v3, 4, v13")
A("  v_add_u32 v13, s37, v13")
A("  s_lshl_b32 s37, s43, 3")
A(f"  s_add_u32 s37, s37, {L_ML}")
A("  v_lshl_add_u32 v14, v2, 5, s37")
A(f"  v_lshlrev_b32 v15, 3, v2")
A(f"  v_add_u32 v15, {L_JUNK}, v15")
A("  v_cmp_gt_u32 vcc, 4, v2")
A("  s_nop 1")
A("  v_cndmask_b32 v14, v15, v14, vcc")
A("  v_bfe_u32 v21, v2, 3, 2")
A("  v_lshrrev_b32 v22, 5, v2")
A("  s_lshl_b32 s37, s43, 1")
A("  v_add_u32 v22, s37, v22")
A("  v_and_b32 v23, 3, v2")
A("  v_mul_u32_u24 v15, 544, v23")
A("  v_lshl_add_u32 v15, v22, 5, v15")
A("  v_bfe_u32 v23, v2, 2, 1")
A("  v_lshl_add_u32 v15, v23, 4, v15")
A("  v_lshl_add_u32 v15, v21, 2, v15")
A(f"  v_add_u32 v15, {L_O}, v15")
A("  v_lshlrev_b32 v16, 5, v21")
A(f"  v_add_u32 v16, {L_ML}, v16")
A("  v_lshl_add_u32 v17, v21, 3, v22")
A("  v_lshlrev_b32 v17, 12, v17")
A("  v_and_b32 v23, 7, v2")
A("  v_lshl_add_u32 v17, v23, 4, v17")
A("  s_lshl_b32 s37, s32, 17")
A("  s_lshl_b32 s38, s33, 7")
A("  s_add_u32 s37, s37, s38")
A(f"  s_add_u32 s39, s37, {BS}")
A("  v_add_u32 v17, s39, v17")
if SKEWL:
    A("  v_lshl_add_u32 v17, v21, 3, v22")
    A("  v_add_u32 v24, s33, v17")
    A("  v_and_b32 v24, 31, v24")
    A("  v_lshlrev_b32 v17, 12, v17")
    A("  v_lshl_add_u32 v17, v24, 7, v17")
    A("  v_lshl_add_u32 v17, v23, 4, v17")
    A("  s_lshl_b32 s39, s32, 17")
    A(f"  s_add_u32 s39, s39, {BS}")
    A("  v_add_u32 v17, s39, v17")
A("  v_lshrrev_b32 v19, 1, v3")
A("  v_lshlrev_b32 v19, 12, v19")
A("  v_and_b32 v23, 1, v3")
A("  v_lshl_add_u32 v19, v23, 6, v19")
A("  v_lshl_add_u32 v19, v4, 4, v19")
A("  s_lshl_b32 s38, s43, 15")
A("  s_add_u32 s39, s37, s38")
A(f"  s_add_u32 s39, s39, {C1}")
A("  v_add_u32 v19, s39, v19")
if REUSE:
    A("  v_lshrrev_b32 v19, 1, v3")
    A("  v_lshlrev_b32 v19, 7, v19")
    A("  v_lshl_add_u32 v19, v23, 6, v19")
    A("  v_lshl_add_u32 v19, v4, 4, v19")
    A("  s_lshl_b32 s38, s43, 10")
    A("  s_lshl_b32 s39, s32, 17")
    A("  s_add_u32 s38, s38, s39")
    A("  s_lshl_b32 s39, s33, 12")
    A("  s_add_u32 s38, s38, s39")
    A(f"  s_add_u32 s38, s38, {BS}")
    A("  v_add_u32 v19, s38, v19")
    if SKEWL:
        A("  v_lshrrev_b32 v19, 1, v3")
        A("  s_lshl_b32 s38, s43, 3")
        A("  s_add_u32 s38, s38, s33")
        A("  v_add_u32 v19, s38, v19")
        A("  v_and_b32 v19, 31, v19")
        A("  v_lshlrev_b32 v19, 7, v19")
        A("  v_lshl_add_u32 v19, v23, 6, v19")
        A("  v_lshl_add_u32 v19, v4, 4, v19")
        A("  s_lshl_b32 s38, s32, 17")
        A("  s_lshl_b32 s39, s33, 12")
        A("  s_add_u32 s38, s38, s39")
        A(f"  s_add_u32 s38, s38, {BS}")
        A("  v_add_u32 v19, s38, v19")
A("  s_lshl_b32 s37, s32, 17")
A("  s_lshl_b32 s38, s33, 12")
A("  s_add_u32 s37, s37, s38")
A(f"  s_add_u32 s37, s37, {BS}")
A("  v_lshrrev_b32 v18, 1, v3")
A("  v_lshlrev_b32 v18, 7, v18")
A("  v_lshl_add_u32 v18, v23, 4, v18")
A("  v_lshl_add_u32 v18, v4, 5, v18")
A("  v_add_u32 v18, s37, v18")
A(f"  v_mov_b32 v20, {L_G}")
A("  v_lshlrev_b32 v9, 2, v4")
A(f"  v_add_u32 v9, {L_H}, v9")
c_sc = (128 ** -0.5) * math.log2(math.e)
if "nomimic" in opts:
    A(f"  s_mov_b32 s54, {f32(c_sc)}")
else:
    A(f"  s_mov_b32 s54, {f32(math.log2(math.e))}")
    A(f"  s_mov_b32 s60, {f32(128 ** -0.5)}")
    A(f"  s_mov_b32 s61, {f32(128 ** -0.5)}")
BA = 232; AA = 240
for c in range(16): A(f"  v_mov_b32 v{BA+c}, 0")
A = _A
IL0 = int(opts.get("il0", 6))
HB = int(opts.get("hb", 0))
NV = 16 - HB
per = -(-len(setup) // (NV - IL0))
k = 0
for i, x in enumerate(vk[:NV]):
    A(x)
    if i >= IL0 - 1 and i < NV - 1:
        n = per
        while k + n < len(setup) and ("vcc" in setup[k+n] or "s_nop" in setup[k+n]): n += 1
        for y in setup[k:k+n]: A(y)
        k += n
stamp(2)
if BX: A("  s_barrier")
for y in setup[k:]: A(y)
if BY: A("  s_barrier")
for x in vk[NV:]: A(x)
for i in range(4): A(f"  global_load_dwordx4 v[{WO+4*i}:{WO+4*i+3}], v10, s[12:13] offset:{1024*i}{NTW}")
for i in range(2): A(f"  global_load_dwordx4 v[{W2+4*i}:{W2+4*i+3}], v11, s[20:21] offset:{1024*i}{NTW}")
stamp(3)
for i in range(4):
    A(f"  s_waitcnt vmcnt({20-2*i})")
    t, rp = i >> 1, (i & 1) * 2
    for j in range(8):
        a = VR + (t*4+rp)*4 + (j >> 1); b = VR + (t*4+rp+1)*4 + (j >> 1)
        A(f"  v_perm_b32 v{VP+4*j+i}, v{b}, v{a}, s{44 + (j & 1)}")
A("  s_waitcnt lgkmcnt(0)")
tag_compute()
stamp(13)
if STAMPS:
    A("  s_waitcnt vmcnt(6)")
    stamp(12)
A("  s_barrier")
for s in range(4):
    A(f"  ds_read_b128 v[{QR+4*s}:{QR+4*s+3}], v12 offset:{64*s}")
A("  ds_read_b96 v[28:30], v20")
for s in range(4):
    A(f"  s_waitcnt vmcnt({6 + ((3-s) if KTS else (6-2*s))}) lgkmcnt({0 if STAMPS else 4-s})")
    if s == 3: stamp(5)
    for t in range(2):
        r = KR + (t*4+s)*4
        cin = "0" if s == 0 else f"v[{SR+4*t}:{SR+4*t+3}]"
        A(f"  v_mfma_f32_16x16x32_bf16 v[{SR+4*t}:{SR+4*t+3}], v[{r}:{r+3}], v[{QR+4*s}:{QR+4*s+3}], {cin}")
A("  s_waitcnt lgkmcnt(0)")
A("  v_readfirstlane_b32 s57, v30")
base58()
A(f"  s_add_u32 s55, s36, {TAG2}")
if "nomimic" in opts:
    A(f"  v_max3_f32 v21, v{SR}, v{SR+1}, v{SR+2}")
    A(f"  v_max3_f32 v22, v{SR+3}, v{SR+4}, v{SR+5}")
    A(f"  v_max3_f32 v21, v21, v{SR+6}, v{SR+7}")
    A(f"  v_max_f32 v21, v21, v22")
    for sw in ("32", "16"):
        A("  v_mov_b32 v22, v21")
        A("  s_nop 1")
        A(f"  v_permlane{sw}_swap_b32 v21, v22")
        A("  v_max_f32 v21, v21, v22")
    A("  v_mul_f32 v21, s54, v21")
    for i in range(8):
        A(f"  v_fma_f32 v{SR+i}, v{SR+i}, s54, -v21")
        if i >= 1: A(f"  v_exp_f32 v{SR+i-1}, v{SR+i-1}")
    A(f"  v_exp_f32 v{SR+7}, v{SR+7}")
else:
    T = QR
    A(f"  v_max3_f32 v21, v{SR}, v{SR+1}, v{SR+2}")
    A(f"  v_max3_f32 v22, v{SR+3}, v{SR+4}, v{SR+5}")
    A(f"  v_max3_f32 v21, v21, v{SR+6}, v{SR+7}")
    A(f"  v_max_f32 v21, v21, v22")
    A("  v_mov_b32 v22, v21")
    A(f"  v_cvt_pk_bf16_f32 v{T}, v{SR}, v{SR+1}")
    A(f"  v_cvt_pk_bf16_f32 v{T+1}, v{SR+2}, v{SR+3}")
    A("  v_permlane32_swap_b32 v21, v22")
    A("  v_max_f32 v21, v21, v22")
    A("  v_mov_b32 v22, v21")
    A(f"  v_cvt_pk_bf16_f32 v{T+2}, v{SR+4}, v{SR+5}")
    A(f"  v_cvt_pk_bf16_f32 v{T+3}, v{SR+6}, v{SR+7}")
    A("  v_permlane16_swap_b32 v21, v22")
    A("  v_max_f32 v21, v21, v22")
    A("  v_cvt_pk_bf16_f32 v21, v21, v21")
    for i in range(4):
        A(f"  v_lshlrev_b32 v{SR+2*i}, 16, v{T+i}")
        A(f"  v_and_b32 v{SR+2*i+1}, 0xffff0000, v{T+i}")
    A("  v_lshlrev_b32 v21, 16, v21")
    for i in range(4): A(f"  v_pk_mul_f32 v[{SR+2*i}:{SR+2*i+1}], v[{SR+2*i}:{SR+2*i+1}], s[60:61]")
    A("  v_mul_f32 v21, s60, v21")
    for i in range(4): A(f"  v_cvt_pk_bf16_f32 v{T+i}, v{SR+2*i}, v{SR+2*i+1}")
    A("  v_cvt_pk_bf16_f32 v21, v21, v21")
    A("  v_lshlrev_b32 v21, 16, v21")
    A("  v_mul_f32 v21, s54, v21")
    for i in range(4):
        A(f"  v_lshlrev_b32 v{SR+2*i}, 16, v{T+i}")
        A(f"  v_and_b32 v{SR+2*i+1}, 0xffff0000, v{T+i}")
        A(f"  v_fma_f32 v{SR+2*i}, v{SR+2*i}, s54, -v21")
        A(f"  v_fma_f32 v{SR+2*i+1}, v{SR+2*i+1}, s54, -v21")
        A(f"  v_exp_f32 v{SR+2*i}, v{SR+2*i}")
        A(f"  v_exp_f32 v{SR+2*i+1}, v{SR+2*i+1}")
for a in range(4):
    A(f"  s_mov_b64 exec, s[{46+2*a}:{47+2*a}]")
    for i in range(4):
        A(f"  v_cvt_pk_bf16_f32 v{PS+4*a+i}, v{SR+2*i}, v{SR+2*i+1}")
    A("  s_mov_b64 exec, -1")
    A("  s_nop 0")
    if a == 0: stamp(6)
    for e in range(2):
        j = 2*a + e
        cin = "0" if a == 0 else f"v[{AO+4*e}:{AO+4*e+3}]"
        A(f"  v_mfma_f32_16x16x32_bf16 v[{AO+4*e}:{AO+4*e+3}], v[{PS+4*a}:{PS+4*a+3}], v[{VP+4*j}:{VP+4*j+3}], {cin}")
    if a == 0:
        A(f"  v_mfma_f32_16x16x32_bf16 v[{AL}:{AL+3}], v[{ONE}:{ONE+3}], v[{PS}:{PS+3}], 0")
A(f"  ds_write2_b32 v14, v21, v{AL} offset0:0 offset1:1")
A("  s_nop 5")
A(f"  ds_write_b128 v13, v[{AO}:{AO+3}]")
A(f"  ds_write_b128 v13, v[{AO+4}:{AO+7}] offset:256")
A("  s_waitcnt lgkmcnt(0)")
stamp(7)
A("  s_barrier")
A(f"  ds_read_b128 v[{KR+8}:{KR+11}], v16")
A(f"  ds_read_b128 v[{KR+12}:{KR+15}], v16 offset:16")
for w in range(4):
    A(f"  ds_read2st64_b32 v[{KR+2*w}:{KR+2*w+1}], v15 offset0:{9*w} offset1:{9*w+1}")
lgkm(4)
m = [KR+8, KR+10, KR+12, KR+14]; l = [x+1 for x in m]
A(f"  v_max3_f32 v21, v{m[0]}, v{m[1]}, v{m[2]}")
A(f"  v_max_f32 v21, v21, v{m[3]}")
for w in range(4):
    A(f"  v_sub_f32 v{m[w]}, v{m[w]}, v21")
    if w >= 1: A(f"  v_exp_f32 v{m[w-1]}, v{m[w-1]}")
A(f"  v_exp_f32 v{m[3]}, v{m[3]}")
A(f"  v_mul_f32 v22, v{m[0]}, v{l[0]}")
for w in range(1, 4): A(f"  v_fmac_f32 v22, v{m[w]}, v{l[w]}")
A("  v_rcp_f32 v23, v22")
A("  v_log_f32 v22, v22")
lgkm(0)
A(f"  v_mul_f32 v{KR+16}, v{m[0]}, v{KR}")
A(f"  v_mul_f32 v{KR+17}, v{m[0]}, v{KR+1}")
for w in range(1, 4):
    A(f"  v_fmac_f32 v{KR+16}, v{m[w]}, v{KR+2*w}")
    A(f"  v_fmac_f32 v{KR+17}, v{m[w]}, v{KR+2*w+1}")
A(f"  v_add_f32 v{KR+18}, v21, v22")
A(f"  v_mul_f32 v{KR+16}, v{KR+16}, v23")
A(f"  v_mul_f32 v{KR+17}, v{KR+17}, v23")
A(f"  v_add_u32 v{KR+19}, s36, v{KR+18}")
A(f"  v_add3_u32 v{KR+19}, v{KR+16}, v{KR+17}, v{KR+19}")
store2(f"global_store_dwordx4 v17, v[{KR+16}:{KR+19}], s[58:59]")
stamp(8)
PB = VP
PA = ["s[46:47]", "s[48:49]", "s[50:51]", "s[52:53]"]
for i in range(4): A(f"  global_load_dwordx4 v[{PB+4*i}:{PB+4*i+3}], v18, s[58:59] offset:{1024*i} sc1")
A(f"  v_mov_b32 v25, {L_HF}")
A("  ds_read_b32 v25, v25")
A("  ds_read_b32 v24, v9")
A("  s_waitcnt vmcnt(5)")
for p in range(2):
    for c in range(4):
        a = WO + 8*p + c; b = a + 4
        A(f"  v_perm_b32 v{WP+8*p+2*c}, v{b}, v{a}, s44")
        A(f"  v_perm_b32 v{WP+8*p+2*c+1}, v{b}, v{a}, s45")
for c in range(4):
    a = W2 + c; b = a + 4
    A(f"  v_perm_b32 v{WP+16+2*c}, v{b}, v{a}, s44")
    A(f"  v_perm_b32 v{WP+16+2*c+1}, v{b}, v{a}, s45")
def redrq(b):
    for c in range(4): A(f"  v_permlane32_swap_b32 v{b+c}, v{b+4+c}")
    for c in range(4): A(f"  v_add_f32 v{b+c}, v{b+c}, v{b+4+c}")
    A("  s_nop 0")
    for c in range(2): A(f"  v_permlane16_swap_b32 v{b+c}, v{b+2+c}")
    for c in range(2): A(f"  v_add_f32 v{b+c}, v{b+c}, v{b+2+c}")
def bpart():
    for c in range(8): A(f"  v_dot2c_f32_bf16 v{BA+c}, v24, v{WP+16+c}")
    A("  s_nop 2")
    redrq(BA)
    A(f"  v_mul_f32 v{BA}, v{BA}, v29")
    A(f"  v_mul_f32 v{BA+1}, v{BA+1}, v29")
A("  s_waitcnt lgkmcnt(0)")
A("  v_readfirstlane_b32 s56, v25")
for p in PA: A(f"  s_mov_b64 {p}, -1")
A("  s_mov_b32 s42, 0")
A("  s_cmp_eq_u32 s56, 0")
A("  s_cbranch_scc1 LBnoh")
bpart()
A("LBnoh:")
stamp(9)
if not PIPEB: A("  s_branch LBchk")
A("LBpoll:")
for i in range(4):
    A(f"  s_mov_b64 exec, {PA[i]}")
    if not PIPEB: A(f"  s_cbranch_execz LBs{i}")
    A(f"  global_load_dwordx4 v[{PB+4*i}:{PB+4*i+3}], v18, s[58:59] offset:{1024*i} sc1")
    A(f"LBs{i}:")
A("  s_mov_b64 exec, -1")
A("  s_add_u32 s42, s42, 1")
A("  s_cmp_eq_u32 s56, 0")
A("  s_cbranch_scc1 Lhtry")
A("LBchk:")
A(f"  s_waitcnt vmcnt({4 if PIPEB else 0})")
ls = [PB+4*i+2 for i in range(4)]
for i in range(4): A(f"  v_add3_u32 v{PB+16+i}, v{PB+4*i}, v{PB+4*i+1}, v{PB+4*i+2}")
A(f"  v_max3_f32 v21, v{ls[0]}, v{ls[1]}, v{ls[2]}")
for i in range(4): A(f"  v_sub_u32 v{PB+16+i}, v{PB+4*i+3}, v{PB+16+i}")
A(f"  v_max_f32 v21, v21, v{ls[3]}")
for i in range(4): A(f"  v_cmp_ne_u32 {PA[i]}, s36, v{PB+16+i}")
A("  v_max_f32_dpp v21, v21, v21 row_ror:2 row_mask:0xf bank_mask:0xf")
A(f"  s_or_b64 s[40:41], {PA[0]}, {PA[1]}")
A(f"  s_or_b64 vcc, {PA[2]}, {PA[3]}")
A("  v_max_f32_dpp v21, v21, v21 row_ror:4 row_mask:0xf bank_mask:0xf")
A(f"  s_or_b64 s[40:41], s[40:41], vcc")
A(f"  s_cbranch_scc0 LBgot")
A(f"  s_cmp_lt_u32 s42, {SPIN}")
A(f"  s_cbranch_scc1 LBpoll")
A("LBgot:")
stamp(10)
A("  v_max_f32_dpp v21, v21, v21 row_ror:8 row_mask:0xf bank_mask:0xf")
lw = [PB+16+i for i in range(4)]
for i in range(4):
    A(f"  v_sub_f32 v{lw[i]}, v{ls[i]}, v21")
    if i >= 1: A(f"  v_exp_f32 v{lw[i-1]}, v{lw[i-1]}")
A(f"  v_exp_f32 v{lw[3]}, v{lw[3]}")
ls = lw
A(f"  v_mul_f32 v22, v{ls[0]}, v{PB}")
A(f"  v_mul_f32 v23, v{ls[0]}, v{PB+1}")
A(f"  v_add_f32 v21, v{ls[0]}, v{ls[1]}")
for i in range(1, 4):
    if i >= 2: A(f"  v_add_f32 v21, v21, v{ls[i]}")
    A(f"  v_fmac_f32 v22, v{ls[i]}, v{PB+4*i}")
    A(f"  v_fmac_f32 v23, v{ls[i]}, v{PB+4*i+1}")
for r in (2, 4, 8):
    for x in (21, 22, 23):
        A(f"  v_add_f32_dpp v{x}, v{x}, v{x} row_ror:{r} row_mask:0xf bank_mask:0xf")
A("  v_rcp_f32 v21, v21")
A("  s_nop 0")
A("  v_mul_f32 v22, v22, v21")
A("  v_mul_f32 v23, v23, v21")
A("  v_cvt_pk_bf16_f32 v22, v22, v23")
A("  s_nop 1")
for p in range(2):
    for c in range(8):
        A(f"  v_dot2c_f32_bf16_dpp v{AA+c}, v22, v{WP+8*p+c} quad_perm:[{p},{p},{p},{p}] row_mask:0xf bank_mask:0xf")
A("  s_nop 2")
redrq(AA)
A("  s_cmp_eq_u32 s56, 0")
A("  s_cbranch_scc1 Lhlate")
A("Lhback:")
A(f"  v_fma_f32 v24, v{AA}, v28, v{BA}")
A(f"  v_fma_f32 v25, v{AA+1}, v28, v{BA+1}")
A(f"  v_add3_u32 v26, v24, v25, {'s55' if REUSE else 's36'}")
if REUSE: A("  s_barrier")
store2("global_store_dwordx4 v19, v[24:27], s[58:59]")
stamp(11)
if B3 and not REUSE: A("  s_barrier")
stamp_store()
A("  s_endpgm")
A("Lhtry:")
A(f"  v_mov_b32 v25, {L_HF}")
A("  ds_read_b32 v25, v25")
A("  ds_read_b32 v24, v9")
A("  s_waitcnt lgkmcnt(0)")
A("  v_readfirstlane_b32 s56, v25")
A("  s_cmp_eq_u32 s56, 0")
A("  s_cbranch_scc1 LBchk")
bpart()
A("  s_branch LBchk")
A("Lhlate:")
A("  s_mov_b32 s42, 0")
A("Lhl2:")
A(f"  v_mov_b32 v25, {L_HF}")
A("  ds_read_b32 v25, v25")
A("  ds_read_b32 v24, v9")
A("  s_add_u32 s42, s42, 1")
A("  s_waitcnt lgkmcnt(0)")
A("  v_readfirstlane_b32 s56, v25")
A(f"  s_cmp_ge_u32 s42, {SPIN}")
A("  s_cbranch_scc1 Lhl3")
A("  s_cmp_eq_u32 s56, 0")
A("  s_cbranch_scc1 Lhl2")
A("Lhl3:")
bpart()
A("  s_branch Lhback")
if LAZYB:
    A("LQsb:")
    A("  s_mov_b32 exec_lo, 0xff")
    A("  s_mov_b32 exec_hi, 0xff")
    A(f"  global_store_dwordx4 v7, v[{AC}:{AC+3}], s[30:31] sc1")
    A("  s_mov_b64 exec, -1")
    A("  s_branch LQsbr")
for n, ins in store2.tail:
    A(f"Lslow{n}:")
    A(f"  {ins} sc1")
    A(f"  s_branch Lsd{n}")
A("Lend:")
A("  s_endpgm")
L += footer(248, 100)
open(sys.argv[1], "w").write("\n".join(L) + "\n")
```

```python
import sys, struct, math
from common import *

opts = {}
for o in (sys.argv[2].split(",") if len(sys.argv) > 2 else []):
    k, _, v = o.partition("=")
    opts[k] = v
STAMPS = "stamps" in opts
NT = "" if "nont" in opts else " nt"
NTW = "" if ("nont" in opts or "nontw" in opts) else " nt"
SLOW = "slow" in opts
NPA = int(opts.get("npa", 6))
W1G = int(opts.get("w1g", 4))
BX = "nobx" not in opts
PIPE = "nopipe" not in opts
PIPEB = "pipeb" in opts

def f32(x): return "0x%08x" % struct.unpack("<I", struct.pack("<f", x))[0]

QS, HS, C2, BS, C1, QB, ST = 0x10000, 0x20000, 0x8000, 0x40000, 0x140000, 0x290000, 0x400000
SLOWOFF = 0x800000
L_Q = 0; L_H = 1280; L_G = 1296; L_F = 1304; L_ML = 1344; L_C = 1472; L_HF = 1308; L_JUNK = 1600; L_O = 2304
LDS_BYTES = L_O + 4 * 2304
SPIN = 0x100000
REUSE = "noreuse" not in opts
TAG2 = 0x5bd1e990

L = header(256, 384, LDS_BYTES); A = L.append
def stamp(k):
    if STAMPS: A(f"  s_memrealtime s[{64+2*k}:{65+2*k}]")
def stamp_store():
    if not STAMPS: return
    A("  s_waitcnt lgkmcnt(0)")
    A("  s_mul_i32 s60, s2, 6")
    A("  s_add_u32 s60, s60, s34")
    A("  s_lshl_b32 s60, s60, 7")
    A(f"  s_add_u32 s60, s60, {ST}")
    A("  v_mov_b32 v4, s60")
    A("  s_mov_b64 exec, 1")
    for k in range(16):
        A(f"  v_mov_b32 v6, s{64+2*k}")
        A(f"  v_mov_b32 v7, s{65+2*k}")
        A(f"  global_store_dwordx2 v4, v[6:7], s[30:31] offset:{8*k}")
        A("  s_nop 1")
def lgkm(n):
    A(f"  s_waitcnt lgkmcnt({0 if STAMPS else n})")
def tag_compute():
    A("  s_and_b32 s36, s35, 0xfffffff8")
    A("  s_add_u32 s36, s36, 0x9e3779b8")
def base58():
    A('  s_cmp_eq_u32 s57, 0')
    A(f'  s_cselect_b32 s58, {SLOWOFF}, 0')
    A('  s_add_u32 s58, s30, s58')
    A('  s_addc_u32 s59, s31, 0')
def store2(ins):
    n = store2.n; store2.n += 1
    A("  s_cmp_eq_u32 s57, 0")
    A(f"  s_cbranch_scc1 Lslow{n}")
    A(f"  {ins}{' nt' if 'stnt' in opts else ''}")
    A(f"Lsd{n}:")
    store2.tail.append((n, ins))
store2.n = 0; store2.tail = []
def red8(regs, tmp, op="add"):
    for r in regs: A(f"  v_{op}_f32_dpp v{r}, v{r}, v{r} row_ror:8 row_mask:0xf bank_mask:0xf")
    for sw in ("32", "16"):
        for r, t in zip(regs, tmp): A(f"  v_mov_b32 v{t}, v{r}")
        A(f"  s_nop {max(0, 2 - len(regs))}")
        for r, t in zip(regs, tmp): A(f"  v_permlane{sw}_swap_b32 v{r}, v{t}")
        for r, t in zip(regs, tmp): A(f"  v_{op}_f32 v{r}, v{r}, v{t}")
def mpoll(name, loads, checks, pend, cnt="s42"):
    n = len(loads)
    for p in pend: A(f"  s_mov_b64 {p}, -1")
    A(f"  s_mov_b32 {cnt}, 0")
    if PIPE:
        for ld in loads: A(f"  {ld}")
    A(f"L{name}poll:")
    for i, ld in enumerate(loads):
        A(f"  s_mov_b64 exec, {pend[i]}")
        if not PIPE: A(f"  s_cbranch_execz L{name}s{i}")
        A(f"  {ld}")
        A(f"L{name}s{i}:")
    A("  s_mov_b64 exec, -1")
    A(f"  s_add_u32 {cnt}, {cnt}, 1")
    A(f"  s_waitcnt vmcnt({n if PIPE else 0})")
    checks()
    A(f"  s_or_b64 s[40:41], {pend[0]}, {pend[1]}")
    A(f"  s_or_b64 vcc, {pend[2]}, {pend[3]}")
    A(f"  s_or_b64 s[40:41], s[40:41], vcc")
    A(f"  s_cbranch_scc0 L{name}got")
    A(f"  s_cmp_lt_u32 {cnt}, {SPIN}")
    A(f"  s_cbranch_scc1 L{name}poll")
    A(f"L{name}got:")

DR = 32; XM, AC = 96, 128
if STAMPS: A("  s_memrealtime s[64:65]")
A("  s_load_dwordx16 s[4:19], s[0:1], 0")
A("  s_load_dwordx8 s[20:27], s[0:1], 64")
A("  s_load_dwordx4 s[28:31], s[0:1], 96")
A("  v_lshrrev_b32 v1, 6, v0")
A("  v_and_b32 v2, 63, v0")
A("  s_cmp_ge_u32 s2, 256")
A("  v_readfirstlane_b32 s34, v1")
A("  s_cbranch_scc1 Lend")
A("  s_and_b32 s32, s2, 7")
A("  s_lshr_b32 s33, s2, 3")
A("  s_cmp_ge_u32 s34, 2")
A("  s_cbranch_scc1 LA")
A("  s_lshl_b32 s37, s32, 10")
A("  s_lshr_b32 s38, s33, 2")
A("  s_lshl_b32 s38, s38, 7")
A("  s_add_u32 s37, s37, s38")
A("  s_and_b32 s39, s33, 3")
A("  s_lshl_b32 s38, s39, 20")
A("  s_add_u32 s37, s37, s38")
A("  s_lshl_b32 s39, s39, 8")
A(f"  s_mul_i32 s38, s32, {(512//W1G)*3584}")
A("  s_lshl_b32 s40, s33, 7")
A("  s_add_u32 s38, s38, s40")
A(f"  s_lshl_b32 s40, s32, {7 if W1G == 8 else 8}")
A(f"  s_mov_b32 s52, {28672 if W1G == 8 else 57344}")
A("  s_movk_i32 s55, 3584")
A("  s_cmp_eq_u32 s34, 0")
A("  s_cselect_b32 s37, s37, s38")
A("  s_cselect_b32 s39, s39, s40")
A("  s_cselect_b32 s52, 0x20000, s52")
A("  s_cselect_b32 s55, 0x2000, s55")
if W1G == 8: A("  s_cselect_b32 s53, 5, 4")
A("  v_lshrrev_b32 v4, 3, v2")
A("  v_and_b32 v3, 7, v2")
A("  v_mul_u32_u24 v5, s52, v4")
A("  v_lshlrev_b32 v6, 4, v3")
A("  v_add3_u32 v5, v5, v6, s37")
if W1G == 8:
    A("  v_lshlrev_b32 v6, s53, v4")
    A("  v_add_u32 v6, s39, v6")
else:
    A("  v_lshl_add_u32 v6, v4, 5, s39")
A("  s_cbranch_scc1 Lnpf")
A("  s_getpc_b64 s[40:41]")
A("Lpc:")
A("  v_lshlrev_b32 v7, 7, v2")
A("  v_min_u32 v7, Lend-Lpc, v7")
A("  global_load_dword v27, v7, s[40:41]")
A("  s_cmp_ge_u32 s33, 28")
A("  s_cbranch_scc1 LMskip")
if W1G == 4:
    A("  s_cmp_ge_u32 s32, 4")
    A("  s_cbranch_scc1 LMskip")
A("  s_cmp_eq_u32 s34, 0")
A("Lnpf:")
A("  s_setprio 3")
A("  s_waitcnt lgkmcnt(0)")
stamp(1)
A("  s_cselect_b64 s[40:41], s[10:11], s[16:17]")
A("  global_load_dwordx4 v[8:11], v6, s[4:5]")
if W1G == 8: A("  s_cbranch_scc0 Lgo")
A("  global_load_dwordx4 v[12:15], v6, s[4:5] offset:16")
A("Lgo:")
for i in range(16):
    A(f"  global_load_dwordx4 v[{DR+4*i}:{DR+4*i+3}], v5, s[40:41]{NTW}")
    if i < 15: A(f"  v_add_u32 v5, s55, v5")
    if i == 7 and W1G == 8: A("  s_cbranch_scc0 LM")
if W1G == 4: A("  s_cbranch_scc0 LM")

B0K = int(opts.get("b0k", -1))
if B0K < 0: A("  s_barrier")
A("  s_load_dword s35, s[30:31], 0")
A("  s_getreg_b32 s39, hwreg(HW_REG_XCC_ID)")
stamp(2)
for c in range(8): A(f"  v_mov_b32 v{AC+c}, 0")
A("  s_and_b32 s39, s39, 7")
A("  s_lshl_b32 s37, s32, 13")
A(f"  s_add_u32 s37, s37, {QS}")
A("  s_lshl_b32 s38, s33, 8")
A("  s_add_u32 s38, s38, s37")
A("  v_lshrrev_b32 v5, 5, v2")
A("  v_lshlrev_b32 v5, 7, v5")
A("  v_lshl_add_u32 v5, v3, 4, v5")
A("  v_add_u32 v5, s38, v5")
A(f"  v_add_u32 v7, {QB-QS}, v5")
A("  v_lshlrev_b32 v6, 10, v4")
A("  v_lshl_add_u32 v6, v3, 4, v6")
A("  v_add_u32 v6, s37, v6")
A("  v_lshrrev_b32 v140, 4, v2")
A("  v_mul_u32_u24 v140, 320, v140")
A("  v_and_b32 v141, 15, v2")
A("  v_lshl_add_u32 v140, v141, 4, v140")
A("  s_lshl_b32 s37, s32, 17")
A("  s_lshl_b32 s38, s33, 12")
A("  s_add_u32 s37, s37, s38")
A(f"  s_add_u32 s37, s37, {C1}")
A("  v_lshl_add_u32 v141, v2, 4, s37")
if REUSE:
    A("  s_lshl_b32 s37, s32, 17")
    A("  s_lshl_b32 s38, s33, 7")
    A("  s_add_u32 s37, s37, s38")
    A(f"  s_add_u32 s37, s37, {BS}")
    A("  v_lshlrev_b32 v152, 12, v4")
    A("  v_lshl_add_u32 v152, v3, 4, v152")
    A("  v_add_u32 v152, s37, v152")
    for i in range(1, 4): A(f"  v_add_u32 v{152+i}, {0x8000*i}, v152")
A("  s_lshl_b32 s37, s33, 10")
A("  s_lshl_b32 s38, s32, 7")
A("  s_add_u32 s37, s37, s38")
A(f"  s_add_u32 s37, s37, {C2}")
A("  v_lshl_add_u32 v143, v2, 4, s37")
A("  v_lshlrev_b32 v142, 4, v3")
A(f"  v_add_u32 v142, {L_C}, v142")
A(f"  v_mov_b32 v144, {L_F}")
A("  s_mov_b32 s44, 0x07060503")
A("  s_mov_b32 s45, 0x07060502")
A("  s_mov_b32 s46, 0x07060501")
A("  s_mov_b32 s47, 0x04000c0c")
A("  s_mov_b32 s48, 0x0706000c")
A("  s_waitcnt vmcnt(16)")
def xmasks(n):
    for k in range(n):
        A(f"  v_and_b32 v{XM+4*k}, 0xffff, v{8+k}")
        A(f"  v_lshlrev_b32 v{XM+1+4*k}, 16, v{8+k}")
        A(f"  v_lshrrev_b32 v{XM+2+4*k}, 16, v{8+k}")
        A(f"  v_and_b32 v{XM+3+4*k}, 0xffff0000, v{8+k}")
def dots(n, extra, bar=-1):
    for i in range(n):
        A(f"  s_waitcnt vmcnt({n-1-i+extra})")
        if i == bar: A("  s_barrier")
        for c in range(4):
            A(f"  v_dot2c_f32_bf16 v{AC+2*c}, v{DR+4*i+c}, v{XM+2*i}")
            A(f"  v_dot2c_f32_bf16 v{AC+1+2*c}, v{DR+4*i+c}, v{XM+1+2*i}")
xmasks(8)
dots(16, 0, B0K)
stamp(4)
A("  s_waitcnt lgkmcnt(0)")
tag_compute()
A("  s_or_b32 s43, s36, s39")
for c in range(4): A(f"  v_permlane32_swap_b32 v{AC+c}, v{AC+4+c}")
for c in range(4): A(f"  v_add_f32 v{AC+c}, v{AC+c}, v{AC+4+c}")
for c in range(4): A(f"  v_add_f32_dpp v{AC+c}, v{AC+c}, v{AC+c} row_ror:8 row_mask:0xf bank_mask:0xf")
for c in range(4): A(f"  v_mov_b32 v{AC+4+c}, v{AC+c}")
for c in range(4): A(f"  v_permlane16_swap_b32 v{AC+c}, v{AC+4+c}")
for c in range(4): A(f"  v_add_f32 v{AC+c}, v{AC+c}, v{AC+4+c}")
for c in range(3): A(f"  v_perm_b32 v{AC+c}, v{AC+c}, v{AC+3}, s{44+c}")
A(f"  v_add3_u32 v{AC+3}, v{AC}, v{AC+1}, v{AC+2}")
A(f"  v_add_u32 v{AC+3}, s43, v{AC+3}")
A("  s_mov_b32 exec_lo, 0xff")
A("  s_mov_b32 exec_hi, 0xff")
A(f"  global_store_dwordx4 v5, v[{AC}:{AC+3}], s[30:31]")
LAZYB = "nolazy" not in opts
if not LAZYB: A(f"  global_store_dwordx4 v7, v[{AC}:{AC+3}], s[30:31] sc1")
A("  s_mov_b64 exec, -1")
stamp(5)
if BX: A("  s_barrier")
stamp(14)
PQ8 = [f"s[{4+2*i}:{5+2*i}]" for i in range(8)]
for p in PQ8: A(f"  s_mov_b64 {p}, -1")
A("  s_mov_b32 s42, 0")
SU = 64
BY = BX and "noby" not in opts
if BY:
    for gI in range(8):
        A(f"  global_load_dwordx4 v[{DR+gI*4}:{DR+gI*4+3}], v6, s[30:31] offset:{(gI>>1)*256+(gI&1)*128} sc1")
    A("  s_barrier")
    A("  s_branch LQiss")
A("LQpoll:")
A(f"  s_cmp_lt_u32 s42, {NPA}")
A("  s_cbranch_scc1 LQpa")
A(f"  v_xor_b32 v6, {QB^QS}, v6")
A("LQpa:")
for gI in range(8):
    ks, hf = gI >> 1, gI & 1
    r = DR + gI*4
    A(f"  s_mov_b64 exec, {PQ8[gI]}")
    A(f"  global_load_dwordx4 v[{r}:{r+3}], v6, s[30:31] offset:{ks*256+hf*128} sc1")
A("  s_mov_b64 exec, -1")
A("LQiss:")
A("  s_add_u32 s42, s42, 1")
stamp(3)
for gI in range(8):
    ks, hf = gI >> 1, gI & 1
    r = DR + gI*4
    A(f"  s_waitcnt vmcnt({7-gI})")
    A(f"  v_add3_u32 v{8+gI}, v{r}, v{r+1}, v{r+2}")
    A(f"  v_perm_b32 v{72+gI}, v{r}, v{r+1}, s47")
    A(f"  v_sub_u32 v{8+gI}, v{r+3}, v{8+gI}")
    A(f"  v_perm_b32 v{72+gI}, v{72+gI}, v{r+2}, s48")
    A(f"  v_xor_b32 v{8+gI}, s43, v{8+gI}")
    src = [r, r+1, r+2, 72+gI]
    if ks == 1:
        p = [r-8, r-7, r-6, 72+gI-2]
        for c in range(4): A(f"  v_add_f32 v{SU+4*hf+c}, v{p[c]}, v{src[c]}")
    elif ks >= 2:
        for c in range(4): A(f"  v_add_f32 v{SU+4*hf+c}, v{SU+4*hf+c}, v{src[c]}")
    A(f"  v_cmp_le_u32 {PQ8[gI]}, 8, v{8+gI}")
    if gI == 6:
        for c in range(2): A(f"  v_cvt_pk_bf16_f32 v{80+c}, v{SU+2*c}, v{SU+2*c+1}")
for c in range(2, 4): A(f"  v_cvt_pk_bf16_f32 v{80+c}, v{SU+2*c}, v{SU+2*c+1}")
A(f"  ds_write_b128 v140, v[80:83]")
A(f"  s_or_b64 s[40:41], {PQ8[0]}, {PQ8[1]}")
A(f"  s_or_b64 s[50:51], {PQ8[2]}, {PQ8[3]}")
A(f"  s_or_b64 s[52:53], {PQ8[4]}, {PQ8[5]}")
A(f"  s_or_b64 vcc, {PQ8[6]}, {PQ8[7]}")
A("  s_or_b64 s[40:41], s[40:41], s[50:51]")
A("  s_or_b64 vcc, vcc, s[52:53]")
A("  s_or_b64 s[40:41], s[40:41], vcc")
A("  s_cbranch_scc0 LQgot")
if LAZYB:
    A(f"  s_cmp_lg_u32 s42, {int(opts.get('lazyr', 2))}")
    A("  s_cbranch_scc1 LQnb")
    A("  s_mov_b32 exec_lo, 0xff")
    A("  s_mov_b32 exec_hi, 0xff")
    A(f"  global_store_dwordx4 v7, v[{AC}:{AC+3}], s[30:31] sc1")
    A("LQnb:")
A(f"  s_cmp_lt_u32 s42, {SPIN}")
A("  s_cbranch_scc1 LQpoll")
A("LQgot:")
A("  v_or3_b32 v8, v8, v9, v10")
A("  v_or3_b32 v11, v11, v12, v13")
A("  v_or3_b32 v8, v8, v14, v15")
A("  v_or_b32 v8, v8, v11")
A("  v_cmp_ne_u32 vcc, 0, v8")
A("  s_cmp_eq_u64 vcc, 0")
A("  s_cselect_b32 s57, 1, 0")
if SLOW: A("  s_mov_b32 s57, 0")
if LAZYB:
    A("  s_cmp_eq_u32 s57, 0")
    A("  s_cbranch_scc1 LQsb")
    A("LQsbr:")
A("  v_mov_b32 v4, s57")
A("  ds_write_b32 v144, v4")
if STAMPS: A("  s_mov_b32 s90, s42"); A("  s_mov_b32 s91, 0")
stamp(6)
A("  s_waitcnt lgkmcnt(0)")
A("  s_barrier")
base58()
A("  s_barrier")
stamp(7)
if "nob3" not in opts: A("  s_barrier")
PQ = ["s[44:45]", "s[46:47]", "s[48:49]", "s[50:51]"]
def chkF():
    for i in range(4): A(f"  v_add3_u32 v{24+i}, v{8+4*i}, v{9+4*i}, {'s39' if REUSE else 's36'}")
    A("  v_add_f32 v28, v8, v12")
    A("  v_add_f32 v29, v9, v13")
    for i in range(4): A(f"  v_cmp_ne_u32 {PQ[i]}, v{24+i}, v{10+4*i}")
    A("  v_add_f32 v30, v16, v20")
    A("  v_add_f32 v31, v17, v21")
    A("  v_add_f32 v28, v28, v30")
    A("  v_add_f32 v29, v29, v31")
if REUSE:
    A(f"  s_add_u32 s39, s36, {TAG2}")
    mpoll("F", [f"global_load_dwordx3 v[{8+4*i}:{10+4*i}], v{152+i}, s[58:59] sc1" for i in range(4)], chkF, PQ)
else:
    mpoll("F", [f"global_load_dwordx3 v[{8+4*i}:{10+4*i}], v141, s[58:59] offset:{1024*i} sc1" for i in range(4)], chkF, PQ)
stamp(8)
red8([28, 29], [36, 37])
A("  v_add3_u32 v30, v28, v29, s36")
A("  s_mov_b64 exec, 0xff")
A("  global_store_dwordx4 v143, v[28:31], s[30:31] sc1")
A("  ds_write_b96 v142, v[28:30]")
stamp(9)
stamp(11)
stamp_store()
A("  s_endpgm")

def gate_loads():
    A("  v_lshlrev_b32 v6, 4, v2")
    A("  global_load_dwordx4 v[16:19], v6, s[4:5]")
    A("  global_load_dwordx4 v[20:23], v6, s[24:25]")
    A("  s_lshl_b32 s37, s33, 5")
    A("  v_lshl_add_u32 v144, v3, 2, s37")
    A("  global_load_dword v145, v144, s[22:23]")
def gate_compute():
    for k in range(4):
        A(f"  v_lshlrev_b32 v{80+2*k}, 16, v{16+k}")
        A(f"  v_and_b32 v{81+2*k}, 0xffff0000, v{16+k}")
        A(f"  v_lshlrev_b32 v{88+2*k}, 16, v{20+k}")
        A(f"  v_and_b32 v{89+2*k}, 0xffff0000, v{20+k}")
    for k in range(8): A(f"  v_mul_f32 v{80+k}, v{80+k}, v{88+k}")
    for k in range(4): A(f"  v_cvt_pk_bf16_f32 v{88+k}, v{80+2*k}, v{81+2*k}")
    for k in range(4):
        A(f"  v_lshlrev_b32 v{80+2*k}, 16, v{88+k}")
        A(f"  v_and_b32 v{81+2*k}, 0xffff0000, v{88+k}")
    for k in range(4): A(f"  v_add_f32 v{80+2*k}, v{80+2*k}, v{81+2*k}")
    A("  v_add_f32 v80, v80, v82")
    A("  v_add_f32 v84, v84, v86")
    A("  v_add_f32 v80, v80, v84")
    for sw in ("32", "16"):
        A("  v_mov_b32 v81, v80")
        A("  s_nop 1")
        A(f"  v_permlane{sw}_swap_b32 v80, v81")
        A("  v_add_f32 v80, v80, v81")
    for r in (8, 4, 2, 1):
        A("  s_nop 1")
        A(f"  v_add_f32_dpp v80, v80, v80 row_ror:{r} row_mask:0xf bank_mask:0xf")
    A("  v_cvt_pk_bf16_f32 v80, v80, v80")
    A("  v_lshlrev_b32 v80, 16, v80")
    A(f"  v_mul_f32 v80, {f32(-math.log2(math.e))}, v80")
    A("  v_exp_f32 v80, v80")
    A("  s_nop 0")
    A("  v_add_f32 v80, 1.0, v80")
    A("  v_rcp_f32 v80, v80")
    A("  s_nop 0")
    A("  v_cvt_pk_bf16_f32 v80, v80, v80")
    A("  v_lshlrev_b32 v80, 16, v80")
    A("  v_sub_f32 v81, 1.0, v80")
    A("  v_cvt_pk_bf16_f32 v81, v81, v81")
    A("  v_lshlrev_b32 v81, 16, v81")
    A(f"  v_mov_b32 v82, {L_G}")
    A("  ds_write_b64 v82, v[80:81]")
A("LMskip:")
A("  s_waitcnt lgkmcnt(0)")
gate_loads()
A("  s_barrier")
A("  s_load_dword s35, s[30:31], 0")
A("  s_waitcnt vmcnt(0) lgkmcnt(0)")
tag_compute()
A("  s_mov_b32 s56, 0")
A("  s_branch LMgate")
A("LM:")
gate_loads()
A("  s_barrier")
A("  s_load_dword s35, s[30:31], 0")
stamp(2)
NM = 8 if W1G == 8 else 16
for c in range(8): A(f"  v_mov_b32 v{AC+c}, 0")
A("  s_lshl_b32 s37, s33, 12")
A(f"  s_add_u32 s37, s37, {HS}")
A("  s_lshl_b32 s38, s32, 9")
A("  s_add_u32 s38, s38, s37")
A("  v_lshl_add_u32 v5, v3, 3, v4")
A("  v_lshl_add_u32 v5, v5, 3, s38")
A(f"  s_waitcnt vmcnt({NM+3})")
xmasks(NM // 2)
dots(NM, 3)
stamp(3)
A("  s_waitcnt lgkmcnt(0)")
tag_compute()
for c in range(4): A(f"  v_permlane32_swap_b32 v{AC+c}, v{AC+4+c}")
for c in range(4): A(f"  v_add_f32 v{AC+c}, v{AC+c}, v{AC+4+c}")
A("  s_nop 0")
for c in range(2): A(f"  v_permlane16_swap_b32 v{AC+c}, v{AC+2+c}")
for c in range(2): A(f"  v_add_f32 v{AC+c}, v{AC+c}, v{AC+2+c}")
A("  s_nop 0")
A(f"  v_add_f32_dpp v{AC}, v{AC}, v{AC} row_ror:8 row_mask:0xf bank_mask:0x3")
A(f"  v_add_f32_dpp v{AC}, v{AC+1}, v{AC+1} row_ror:8 row_mask:0xf bank_mask:0xc")
A(f"  v_xor_b32 v{AC+1}, s36, v{AC}")
HE = "hlate" not in opts
if HE:
    A(f"  global_store_dwordx2 v5, v[{AC}:{AC+1}], s[30:31] sc1")
    A("  s_waitcnt vmcnt(1)")
else:
    A("  s_waitcnt vmcnt(0)")
    A("  s_mov_b32 s56, 1")
A("LMgate:")
gate_compute()
A("  s_min_u32 s49, s33, 27")
A("  s_lshl_b32 s37, s49, 12")
A("  s_lshl_b32 s38, s32, 6")
A("  s_add_u32 s38, s38, s37")
A(f"  s_add_u32 s38, s38, {HS}")
A(f"  v_and_b32 v146, {W1G-1}, v4")
A("  v_lshlrev_b32 v146, 9, v146")
A("  v_lshl_add_u32 v146, v3, 3, v146")
A("  v_add_u32 v146, s38, v146")
A("  s_lshl_b32 s37, s49, 7")
A("  s_lshl_b32 s38, s32, 4")
A("  s_add_u32 s37, s37, s38")
A("  v_lshl_add_u32 v147, v3, 1, s37")
A("  v_lshlrev_b32 v148, 1, v3")
A(f"  v_add_u32 v148, {L_H}, v148")
A("  s_lshl_b32 s37, s32, 17")
A("  s_lshl_b32 s38, s33, 12")
A("  s_add_u32 s37, s37, s38")
A(f"  s_add_u32 s37, s37, {BS}")
A("  v_lshl_add_u32 v8, v2, 4, s37")
A(f"  v_add_u32 v11, {C1-BS}, v8")
A(f"  v_mov_b32 v152, {L_HF}")
A("  v_mov_b32 v153, 0")
A("  ds_write_b32 v152, v153")
A("  global_load_ushort v149, v147, s[18:19]")
if BX: A("  s_barrier")
if not HE:
    A("  s_cmp_eq_u32 s56, 0")
    A("  s_cbranch_scc1 LMns")
    A(f"  global_store_dwordx2 v5, v[{AC}:{AC+1}], s[30:31] sc1")
    A("LMns:")
MPRE = "mpre" in opts
if BY and not MPRE: A("  s_barrier")
A("  global_load_dwordx2 v[150:151], v146, s[30:31] sc1")
for i in range(4): A(f"  global_load_dwordx4 v[{32+4*i}:{35+4*i}], v8, s[30:31] offset:{1024*i} sc1")
C1E = "c1late" not in opts and not REUSE
if C1E:
    for i in range(4): A(f"  global_load_dwordx4 v[{48+4*i}:{51+4*i}], v11, s[30:31] offset:{1024*i} sc1")
if BY and MPRE: A("  s_barrier")
A("  s_lshl_b32 s37, s33, 10")
A(f"  s_add_u32 s37, s37, {C2}")
A("  v_lshl_add_u32 v142, v2, 4, s37")
A("  v_lshlrev_b32 v143, 4, v3")
A(f"  v_add_u32 v143, {L_C}, v143")
A("  s_lshl_b32 s37, s32, 3")
A("  s_lshl_b64 s[46:47], 0xff, s37")
A("  v_lshlrev_b32 v84, 16, v145")
A("  v_and_b32 v85, 0xffff0000, v145")
A("  v_mul_f32 v84, v84, v81")
A("  v_mul_f32 v85, v85, v81")
A("  v_mov_b32 v12, 0")
A("  v_mov_b32 v13, 0")
A("  v_mov_b32 v14, 1")
A("  ds_write_b96 v143, v[12:14]")
A("  s_waitcnt lgkmcnt(0)")
stamp(4)
A("  s_barrier")
if not C1E and not REUSE:
    for i in range(4): A(f"  global_load_dwordx4 v[{48+4*i}:{51+4*i}], v11, s[30:31] offset:{1024*i} sc1")
A("  s_barrier")
A("  s_mov_b32 s42, 0")
A(f"  s_waitcnt vmcnt({4 if REUSE else 8})")
A("  s_branch LHchk")
A("LHpoll:")
A("  global_load_dwordx2 v[150:151], v146, s[30:31] sc1")
A("  s_add_u32 s42, s42, 1")
A("  s_waitcnt vmcnt(0)")
A("LHchk:")
A("  v_xor_b32 v9, v150, v151")
A("  v_cmp_ne_u32 vcc, s36, v9")
A("  s_cbranch_vccz LHgot")
A(f"  s_cmp_lt_u32 s42, {SPIN}")
A("  s_cbranch_scc1 LHpoll")
A("LHgot:")
A("  v_mov_b32 v8, v150")
A("  s_cmp_lt_u32 s33, 28")
A("  s_cselect_b32 s40, -1, 0")
if W1G == 8:
    red8([8], [9])
else:
    A("  v_add_f32_dpp v8, v8, v8 row_ror:8 row_mask:0xf bank_mask:0xf")
    A("  v_mov_b32 v9, v8")
    A("  s_nop 1")
    A("  v_permlane16_swap_b32 v8, v9")
    A("  v_add_f32 v8, v8, v9")
A("  v_cvt_pk_bf16_f32 v8, v8, v8")
A("  v_lshlrev_b32 v149, 16, v149")
A("  v_lshlrev_b32 v8, 16, v8")
A("  v_add_f32 v8, v8, v149")
A("  v_cvt_pk_bf16_f32 v8, v8, v8")
A("  v_lshlrev_b32 v8, 16, v8")
k1 = -2.0 * math.log2(math.e) * math.sqrt(2.0 / math.pi)
k2 = k1 * 0.044715
A(f"  s_mov_b32 s41, {f32(k2)}")
A(f"  v_mov_b32 v10, {f32(k1)}")
A("  v_mul_f32 v9, v8, v8")
A("  v_fma_f32 v9, v9, s41, v10")
A("  v_mul_f32 v9, v9, v8")
A("  v_exp_f32 v9, v9")
A("  s_nop 0")
A("  v_add_f32 v9, 1.0, v9")
A("  v_rcp_f32 v9, v9")
A("  s_nop 0")
A("  v_mul_f32 v8, v8, v9")
A("  s_nop 1")
A("  v_mov_b32_dpp v9, v8 quad_perm:[1,0,3,2] row_mask:0xf bank_mask:0xf")
A("  v_cvt_pk_bf16_f32 v8, v8, v9")
A("  v_and_b32 v8, s40, v8")
A("  s_mov_b64 exec, 0x55")
A("  ds_write_b32 v148, v8")
A("  s_mov_b64 exec, -1")
A("  v_mov_b32 v153, 1")
A("  ds_write_b32 v152, v153")
stamp(12)
if STAMPS: A("  s_mov_b32 s90, s42"); A("  s_mov_b32 s91, 0")
B3 = "nob3" not in opts
A("  s_and_b32 s37, s33, 7")
A("  s_cmp_lg_u32 s37, s32")
if B3:
    A("  s_cbranch_scc1 LMnf")
    A("  global_load_dwordx3 v[12:14], v142, s[30:31] sc1")
    A("LMnf:")
    A("  s_barrier")
A("  s_cbranch_scc1 LMend")
A("  s_mov_b64 s[44:45], -1")
A("  s_mov_b32 s42, 0")
if PIPE:
    A("  s_andn2_b64 exec, s[44:45], s[46:47]")
    A("  global_load_dwordx3 v[12:14], v142, s[30:31] sc1")
A("LGpoll:")
A("  s_andn2_b64 exec, s[44:45], s[46:47]")
if not PIPE: A("  s_cbranch_execz LGs0")
A("  global_load_dwordx3 v[12:14], v142, s[30:31] sc1")
A("LGs0:")
A("  s_and_b64 exec, s[44:45], s[46:47]")
A("  ds_read_b96 v[12:14], v143")
A("  s_mov_b64 exec, -1")
A("  s_add_u32 s42, s42, 1")
A(f"  s_waitcnt vmcnt({1 if PIPE else 0}) lgkmcnt(0)")
A("  v_add3_u32 v16, v12, v13, s36")
A("  v_mov_b32 v18, v12")
A("  v_mov_b32 v19, v13")
A("  v_cmp_ne_u32 s[44:45], v16, v14")
A("  s_cmp_lg_u64 s[44:45], 0")
A("  s_cbranch_scc0 LGgot")
A(f"  s_cmp_lt_u32 s42, {SPIN}")
A("  s_cbranch_scc1 LGpoll")
A("LGgot:")
stamp(10)
red8([18, 19], [10, 11])
A("  v_add_f32 v18, v18, v84")
A("  v_add_f32 v19, v19, v85")
A("  v_cvt_pk_bf16_f32 v8, v18, v19")
A("  s_mov_b64 exec, 0xff")
A("  global_store_dword v144, v8, s[26:27]")
A("  s_cmp_lg_u32 s2, 0")
A("  s_cbranch_scc1 LMend")
A("  s_mov_b64 exec, 1")
A("  v_mov_b32 v3, 0")
A("  v_mov_b32 v9, s36")
A("  global_store_dword v3, v9, s[30:31]")
A("LMend:")
stamp(11)
stamp_store()
A("  s_endpgm")

KR, VR, VP, WO, W2, QR, PS, SR, AO, AL, ONE, WP = 32, 64, 96, 128, 144, 152, 168, 184, 192, 200, 204, 208
for _ in range(int(opts.get("pad", 0))): A("  s_nop 0")
A("LA:")
A("  s_sub_u32 s43, s34, 2")
A("  s_lshl_b32 s54, s32, 24")
A("  s_lshl_b32 s38, s33, 15")
A("  s_add_u32 s54, s54, s38")
A("  s_lshl_b32 s38, s43, 13")
A("  s_add_u32 s54, s54, s38")
A(f"  s_add_u32 s54, s54, {61440*256}")
A("  v_and_b32 v3, 15, v2")
A("  v_lshrrev_b32 v4, 4, v2")
A("  v_lshlrev_b32 v9, 4, v3")
A("  s_lshl_b32 s37, s32, 19")
A("  s_lshl_b32 s38, s33, 14")
A("  s_add_u32 s37, s37, s38")
A("  s_lshl_b32 s38, s33, 16")
A("  s_lshl_b32 s39, s32, 13")
A("  s_add_u32 s38, s38, s39")
A("  s_lshl_b32 s39, s43, 8")
A("  s_cmp_lt_u32 s33, 28")
A("  s_cselect_b32 s38, s38, s37")
A("  v_lshl_add_u32 v10, v4, 12, v9")
A("  v_lshl_add_u32 v11, v4, 11, v9")
A("  v_add3_u32 v10, v10, s37, v1" if False else "  s_add_u32 s37, s37, s39")
A("  s_add_u32 s38, s38, s39")
A("  v_add_u32 v10, s37, v10")
A("  v_add_u32 v11, s38, v11")
A("  v_lshl_add_u32 v7, v4, 10, v9")
A("  v_add_u32 v7, s54, v7")
A("  v_add_u32 v8, 0x1000, v7")
A("  v_lshlrev_b32 v5, 8, v3")
A("  v_lshl_add_u32 v5, v4, 4, v5")
A("  v_add_u32 v5, s54, v5")
A("  v_add_u32 v6, 0x1000, v5")
A("  s_cmp_lt_u32 s33, 28")
A("  s_waitcnt lgkmcnt(0)")
A("  s_cselect_b64 s[20:21], s[20:21], s[12:13]")
A("  s_barrier")
stamp(1)
KTS = "kts" in opts
vk = [f"  global_load_dwordx4 v[{VR+(t*4+rr)*4}:{VR+(t*4+rr)*4+3}], v{7+t}, s[8:9] offset:{256*rr}{NT}" for t in range(2) for rr in range(4)]
vk += [f"  global_load_dwordx4 v[{KR+(t*4+s_)*4}:{KR+(t*4+s_)*4+3}], v{5+t}, s[6:7] offset:{64*s_}{NT}" for s_ in range(4) for t in range(2)]
_A = A
setup = []
A = setup.append
A("  s_load_dword s35, s[30:31], 0")
for i in range(16): A(f"  v_mov_b32 v{PS+i}, 0")
for i in range(4): A(f"  v_mov_b32 v{ONE+i}, 0x3f803f80")
A("  s_mov_b32 s44, 0x05040100")
A("  s_mov_b32 s45, 0x07060302")
for a in range(4):
    A(f"  s_mov_b32 s{46+2*a}, 0x{(0x000f000f << (4*a)):08x}")
    A(f"  s_mov_b32 s{47+2*a}, 0x{(0x000f000f << (4*a)):08x}")
A("  v_and_b32 v12, 3, v2")
A("  v_mul_u32_u24 v12, 320, v12")
A("  v_lshl_add_u32 v12, v4, 4, v12")
A("  s_mul_i32 s37, s43, 2304")
A(f"  s_add_u32 s37, s37, {L_O}")
A("  v_mul_u32_u24 v13, 544, v4")
A("  v_lshl_add_u32 v13, v3, 4, v13")
A("  v_add_u32 v13, s37, v13")
A("  s_lshl_b32 s37, s43, 3")
A(f"  s_add_u32 s37, s37, {L_ML}")
A("  v_lshl_add_u32 v14, v2, 5, s37")
A(f"  v_lshlrev_b32 v15, 3, v2")
A(f"  v_add_u32 v15, {L_JUNK}, v15")
A("  v_cmp_gt_u32 vcc, 4, v2")
A("  s_nop 1")
A("  v_cndmask_b32 v14, v15, v14, vcc")
A("  v_bfe_u32 v21, v2, 3, 2")
A("  v_lshrrev_b32 v22, 5, v2")
A("  s_lshl_b32 s37, s43, 1")
A("  v_add_u32 v22, s37, v22")
A("  v_and_b32 v23, 3, v2")
A("  v_mul_u32_u24 v15, 544, v23")
A("  v_lshl_add_u32 v15, v22, 5, v15")
A("  v_bfe_u32 v23, v2, 2, 1")
A("  v_lshl_add_u32 v15, v23, 4, v15")
A("  v_lshl_add_u32 v15, v21, 2, v15")
A(f"  v_add_u32 v15, {L_O}, v15")
A("  v_lshlrev_b32 v16, 5, v21")
A(f"  v_add_u32 v16, {L_ML}, v16")
A("  v_lshl_add_u32 v17, v21, 3, v22")
A("  v_lshlrev_b32 v17, 12, v17")
A("  v_and_b32 v23, 7, v2")
A("  v_lshl_add_u32 v17, v23, 4, v17")
A("  s_lshl_b32 s37, s32, 17")
A("  s_lshl_b32 s38, s33, 7")
A("  s_add_u32 s37, s37, s38")
A(f"  s_add_u32 s39, s37, {BS}")
A("  v_add_u32 v17, s39, v17")
A("  v_lshrrev_b32 v19, 1, v3")
A("  v_lshlrev_b32 v19, 12, v19")
A("  v_and_b32 v23, 1, v3")
A("  v_lshl_add_u32 v19, v23, 6, v19")
A("  v_lshl_add_u32 v19, v4, 4, v19")
A("  s_lshl_b32 s38, s43, 15")
A("  s_add_u32 s39, s37, s38")
A(f"  s_add_u32 s39, s39, {C1}")
A("  v_add_u32 v19, s39, v19")
if REUSE:
    A("  v_lshrrev_b32 v19, 1, v3")
    A("  v_lshlrev_b32 v19, 7, v19")
    A("  v_lshl_add_u32 v19, v23, 6, v19")
    A("  v_lshl_add_u32 v19, v4, 4, v19")
    A("  s_lshl_b32 s38, s43, 10")
    A("  s_lshl_b32 s39, s32, 17")
    A("  s_add_u32 s38, s38, s39")
    A("  s_lshl_b32 s39, s33, 12")
    A("  s_add_u32 s38, s38, s39")
    A(f"  s_add_u32 s38, s38, {BS}")
    A("  v_add_u32 v19, s38, v19")
A("  s_lshl_b32 s37, s32, 17")
A("  s_lshl_b32 s38, s33, 12")
A("  s_add_u32 s37, s37, s38")
A(f"  s_add_u32 s37, s37, {BS}")
A("  v_lshrrev_b32 v18, 1, v3")
A("  v_lshlrev_b32 v18, 7, v18")
A("  v_lshl_add_u32 v18, v23, 4, v18")
A("  v_lshl_add_u32 v18, v4, 5, v18")
A("  v_add_u32 v18, s37, v18")
A(f"  v_mov_b32 v20, {L_G}")
A("  v_lshlrev_b32 v9, 2, v4")
A(f"  v_add_u32 v9, {L_H}, v9")
c_sc = (128 ** -0.5) * math.log2(math.e)
A(f"  s_mov_b32 s54, {f32(c_sc)}")
BA = 232; AA = 240
for c in range(16): A(f"  v_mov_b32 v{BA+c}, 0")
A = _A
IL0 = int(opts.get("il0", 6))
HB = int(opts.get("hb", 0))
NV = 16 - HB
per = -(-len(setup) // (NV - IL0))
k = 0
for i, x in enumerate(vk[:NV]):
    A(x)
    if i >= IL0 - 1 and i < NV - 1:
        n = per
        while k + n < len(setup) and ("vcc" in setup[k+n] or "s_nop" in setup[k+n]): n += 1
        for y in setup[k:k+n]: A(y)
        k += n
stamp(2)
if BX: A("  s_barrier")
for y in setup[k:]: A(y)
if BY: A("  s_barrier")
for x in vk[NV:]: A(x)
for i in range(4): A(f"  global_load_dwordx4 v[{WO+4*i}:{WO+4*i+3}], v10, s[12:13] offset:{1024*i}{NTW}")
for i in range(2): A(f"  global_load_dwordx4 v[{W2+4*i}:{W2+4*i+3}], v11, s[20:21] offset:{1024*i}{NTW}")
stamp(3)
for i in range(4):
    A(f"  s_waitcnt vmcnt({20-2*i})")
    t, rp = i >> 1, (i & 1) * 2
    for j in range(8):
        a = VR + (t*4+rp)*4 + (j >> 1); b = VR + (t*4+rp+1)*4 + (j >> 1)
        A(f"  v_perm_b32 v{VP+4*j+i}, v{b}, v{a}, s{44 + (j & 1)}")
A("  s_waitcnt lgkmcnt(0)")
tag_compute()
stamp(13)
if STAMPS:
    A("  s_waitcnt vmcnt(6)")
    stamp(12)
A("  s_barrier")
for s in range(4):
    A(f"  ds_read_b128 v[{QR+4*s}:{QR+4*s+3}], v12 offset:{64*s}")
A("  ds_read_b96 v[28:30], v20")
for s in range(4):
    A(f"  s_waitcnt vmcnt({6 + ((3-s) if KTS else (6-2*s))}) lgkmcnt({0 if STAMPS else 4-s})")
    if s == 3: stamp(5)
    for t in range(2):
        r = KR + (t*4+s)*4
        cin = "0" if s == 0 else f"v[{SR+4*t}:{SR+4*t+3}]"
        A(f"  v_mfma_f32_16x16x32_bf16 v[{SR+4*t}:{SR+4*t+3}], v[{r}:{r+3}], v[{QR+4*s}:{QR+4*s+3}], {cin}")
A("  s_waitcnt lgkmcnt(0)")
A("  v_readfirstlane_b32 s57, v30")
base58()
A(f"  s_add_u32 s55, s36, {TAG2}")
A(f"  v_max3_f32 v21, v{SR}, v{SR+1}, v{SR+2}")
A(f"  v_max3_f32 v22, v{SR+3}, v{SR+4}, v{SR+5}")
A(f"  v_max3_f32 v21, v21, v{SR+6}, v{SR+7}")
A(f"  v_max_f32 v21, v21, v22")
for sw in ("32", "16"):
    A("  v_mov_b32 v22, v21")
    A("  s_nop 1")
    A(f"  v_permlane{sw}_swap_b32 v21, v22")
    A("  v_max_f32 v21, v21, v22")
A("  v_mul_f32 v21, s54, v21")
for i in range(8):
    A(f"  v_fma_f32 v{SR+i}, v{SR+i}, s54, -v21")
    if i >= 1: A(f"  v_exp_f32 v{SR+i-1}, v{SR+i-1}")
A(f"  v_exp_f32 v{SR+7}, v{SR+7}")
for a in range(4):
    A(f"  s_mov_b64 exec, s[{46+2*a}:{47+2*a}]")
    for i in range(4):
        A(f"  v_cvt_pk_bf16_f32 v{PS+4*a+i}, v{SR+2*i}, v{SR+2*i+1}")
    A("  s_mov_b64 exec, -1")
    A("  s_nop 0")
    if a == 0: stamp(6)
    for e in range(2):
        j = 2*a + e
        cin = "0" if a == 0 else f"v[{AO+4*e}:{AO+4*e+3}]"
        A(f"  v_mfma_f32_16x16x32_bf16 v[{AO+4*e}:{AO+4*e+3}], v[{PS+4*a}:{PS+4*a+3}], v[{VP+4*j}:{VP+4*j+3}], {cin}")
    if a == 0:
        A(f"  v_mfma_f32_16x16x32_bf16 v[{AL}:{AL+3}], v[{ONE}:{ONE+3}], v[{PS}:{PS+3}], 0")
A(f"  ds_write2_b32 v14, v21, v{AL} offset0:0 offset1:1")
A("  s_nop 5")
A(f"  ds_write_b128 v13, v[{AO}:{AO+3}]")
A(f"  ds_write_b128 v13, v[{AO+4}:{AO+7}] offset:256")
A("  s_waitcnt lgkmcnt(0)")
stamp(7)
A("  s_barrier")
A(f"  ds_read_b128 v[{KR+8}:{KR+11}], v16")
A(f"  ds_read_b128 v[{KR+12}:{KR+15}], v16 offset:16")
for w in range(4):
    A(f"  ds_read2st64_b32 v[{KR+2*w}:{KR+2*w+1}], v15 offset0:{9*w} offset1:{9*w+1}")
lgkm(4)
m = [KR+8, KR+10, KR+12, KR+14]; l = [x+1 for x in m]
A(f"  v_max3_f32 v21, v{m[0]}, v{m[1]}, v{m[2]}")
A(f"  v_max_f32 v21, v21, v{m[3]}")
for w in range(4):
    A(f"  v_sub_f32 v{m[w]}, v{m[w]}, v21")
    if w >= 1: A(f"  v_exp_f32 v{m[w-1]}, v{m[w-1]}")
A(f"  v_exp_f32 v{m[3]}, v{m[3]}")
A(f"  v_mul_f32 v22, v{m[0]}, v{l[0]}")
for w in range(1, 4): A(f"  v_fmac_f32 v22, v{m[w]}, v{l[w]}")
A("  v_rcp_f32 v23, v22")
A("  v_log_f32 v22, v22")
lgkm(0)
A(f"  v_mul_f32 v{KR+16}, v{m[0]}, v{KR}")
A(f"  v_mul_f32 v{KR+17}, v{m[0]}, v{KR+1}")
for w in range(1, 4):
    A(f"  v_fmac_f32 v{KR+16}, v{m[w]}, v{KR+2*w}")
    A(f"  v_fmac_f32 v{KR+17}, v{m[w]}, v{KR+2*w+1}")
A(f"  v_add_f32 v{KR+18}, v21, v22")
A(f"  v_mul_f32 v{KR+16}, v{KR+16}, v23")
A(f"  v_mul_f32 v{KR+17}, v{KR+17}, v23")
A(f"  v_add_u32 v{KR+19}, s36, v{KR+18}")
A(f"  v_add3_u32 v{KR+19}, v{KR+16}, v{KR+17}, v{KR+19}")
store2(f"global_store_dwordx4 v17, v[{KR+16}:{KR+19}], s[58:59]")
stamp(8)
PB = VP
PA = ["s[46:47]", "s[48:49]", "s[50:51]", "s[52:53]"]
for i in range(4): A(f"  global_load_dwordx4 v[{PB+4*i}:{PB+4*i+3}], v18, s[58:59] offset:{1024*i} sc1")
A(f"  v_mov_b32 v25, {L_HF}")
A("  ds_read_b32 v25, v25")
A("  ds_read_b32 v24, v9")
A("  s_waitcnt vmcnt(5)")
for p in range(2):
    for c in range(4):
        a = WO + 8*p + c; b = a + 4
        A(f"  v_perm_b32 v{WP+8*p+2*c}, v{b}, v{a}, s44")
        A(f"  v_perm_b32 v{WP+8*p+2*c+1}, v{b}, v{a}, s45")
for c in range(4):
    a = W2 + c; b = a + 4
    A(f"  v_perm_b32 v{WP+16+2*c}, v{b}, v{a}, s44")
    A(f"  v_perm_b32 v{WP+16+2*c+1}, v{b}, v{a}, s45")
def redrq(b):
    for c in range(4): A(f"  v_permlane32_swap_b32 v{b+c}, v{b+4+c}")
    for c in range(4): A(f"  v_add_f32 v{b+c}, v{b+c}, v{b+4+c}")
    A("  s_nop 0")
    for c in range(2): A(f"  v_permlane16_swap_b32 v{b+c}, v{b+2+c}")
    for c in range(2): A(f"  v_add_f32 v{b+c}, v{b+c}, v{b+2+c}")
def bpart():
    for c in range(8): A(f"  v_dot2c_f32_bf16 v{BA+c}, v24, v{WP+16+c}")
    A("  s_nop 2")
    redrq(BA)
    A(f"  v_mul_f32 v{BA}, v{BA}, v29")
    A(f"  v_mul_f32 v{BA+1}, v{BA+1}, v29")
A("  s_waitcnt lgkmcnt(0)")
A("  v_readfirstlane_b32 s56, v25")
for p in PA: A(f"  s_mov_b64 {p}, -1")
A("  s_mov_b32 s42, 0")
A("  s_cmp_eq_u32 s56, 0")
A("  s_cbranch_scc1 LBnoh")
bpart()
A("LBnoh:")
stamp(9)
if not PIPEB: A("  s_branch LBchk")
A("LBpoll:")
for i in range(4):
    A(f"  s_mov_b64 exec, {PA[i]}")
    if not PIPEB: A(f"  s_cbranch_execz LBs{i}")
    A(f"  global_load_dwordx4 v[{PB+4*i}:{PB+4*i+3}], v18, s[58:59] offset:{1024*i} sc1")
    A(f"LBs{i}:")
A("  s_mov_b64 exec, -1")
A("  s_add_u32 s42, s42, 1")
A("  s_cmp_eq_u32 s56, 0")
A("  s_cbranch_scc1 Lhtry")
A("LBchk:")
A(f"  s_waitcnt vmcnt({4 if PIPEB else 0})")
ls = [PB+4*i+2 for i in range(4)]
for i in range(4): A(f"  v_add3_u32 v{PB+16+i}, v{PB+4*i}, v{PB+4*i+1}, v{PB+4*i+2}")
A(f"  v_max3_f32 v21, v{ls[0]}, v{ls[1]}, v{ls[2]}")
for i in range(4): A(f"  v_sub_u32 v{PB+16+i}, v{PB+4*i+3}, v{PB+16+i}")
A(f"  v_max_f32 v21, v21, v{ls[3]}")
for i in range(4): A(f"  v_cmp_ne_u32 {PA[i]}, s36, v{PB+16+i}")
A("  v_max_f32_dpp v21, v21, v21 row_ror:2 row_mask:0xf bank_mask:0xf")
A(f"  s_or_b64 s[40:41], {PA[0]}, {PA[1]}")
A(f"  s_or_b64 vcc, {PA[2]}, {PA[3]}")
A("  v_max_f32_dpp v21, v21, v21 row_ror:4 row_mask:0xf bank_mask:0xf")
A(f"  s_or_b64 s[40:41], s[40:41], vcc")
A(f"  s_cbranch_scc0 LBgot")
A(f"  s_cmp_lt_u32 s42, {SPIN}")
A(f"  s_cbranch_scc1 LBpoll")
A("LBgot:")
stamp(10)
A("  v_max_f32_dpp v21, v21, v21 row_ror:8 row_mask:0xf bank_mask:0xf")
lw = [PB+16+i for i in range(4)]
for i in range(4):
    A(f"  v_sub_f32 v{lw[i]}, v{ls[i]}, v21")
    if i >= 1: A(f"  v_exp_f32 v{lw[i-1]}, v{lw[i-1]}")
A(f"  v_exp_f32 v{lw[3]}, v{lw[3]}")
ls = lw
A(f"  v_mul_f32 v22, v{ls[0]}, v{PB}")
A(f"  v_mul_f32 v23, v{ls[0]}, v{PB+1}")
A(f"  v_add_f32 v21, v{ls[0]}, v{ls[1]}")
for i in range(1, 4):
    if i >= 2: A(f"  v_add_f32 v21, v21, v{ls[i]}")
    A(f"  v_fmac_f32 v22, v{ls[i]}, v{PB+4*i}")
    A(f"  v_fmac_f32 v23, v{ls[i]}, v{PB+4*i+1}")
for r in (2, 4, 8):
    for x in (21, 22, 23):
        A(f"  v_add_f32_dpp v{x}, v{x}, v{x} row_ror:{r} row_mask:0xf bank_mask:0xf")
A("  v_rcp_f32 v21, v21")
A("  s_nop 0")
A("  v_mul_f32 v22, v22, v21")
A("  v_mul_f32 v23, v23, v21")
A("  v_cvt_pk_bf16_f32 v22, v22, v23")
A("  s_nop 1")
for p in range(2):
    for c in range(8):
        A(f"  v_dot2c_f32_bf16_dpp v{AA+c}, v22, v{WP+8*p+c} quad_perm:[{p},{p},{p},{p}] row_mask:0xf bank_mask:0xf")
A("  s_nop 2")
redrq(AA)
A("  s_cmp_eq_u32 s56, 0")
A("  s_cbranch_scc1 Lhlate")
A("Lhback:")
A(f"  v_fma_f32 v24, v{AA}, v28, v{BA}")
A(f"  v_fma_f32 v25, v{AA+1}, v28, v{BA+1}")
A(f"  v_add3_u32 v26, v24, v25, {'s55' if REUSE else 's36'}")
if REUSE: A("  s_barrier")
store2("global_store_dwordx4 v19, v[24:27], s[58:59]")
stamp(11)
if B3 and not REUSE: A("  s_barrier")
stamp_store()
A("  s_endpgm")
A("Lhtry:")
A(f"  v_mov_b32 v25, {L_HF}")
A("  ds_read_b32 v25, v25")
A("  ds_read_b32 v24, v9")
A("  s_waitcnt lgkmcnt(0)")
A("  v_readfirstlane_b32 s56, v25")
A("  s_cmp_eq_u32 s56, 0")
A("  s_cbranch_scc1 LBchk")
bpart()
A("  s_branch LBchk")
A("Lhlate:")
A("  s_mov_b32 s42, 0")
A("Lhl2:")
A(f"  v_mov_b32 v25, {L_HF}")
A("  ds_read_b32 v25, v25")
A("  ds_read_b32 v24, v9")
A("  s_add_u32 s42, s42, 1")
A("  s_waitcnt lgkmcnt(0)")
A("  v_readfirstlane_b32 s56, v25")
A(f"  s_cmp_ge_u32 s42, {SPIN}")
A("  s_cbranch_scc1 Lhl3")
A("  s_cmp_eq_u32 s56, 0")
A("  s_cbranch_scc1 Lhl2")
A("Lhl3:")
bpart()
A("  s_branch Lhback")
if LAZYB:
    A("LQsb:")
    A("  s_mov_b32 exec_lo, 0xff")
    A("  s_mov_b32 exec_hi, 0xff")
    A(f"  global_store_dwordx4 v7, v[{AC}:{AC+3}], s[30:31] sc1")
    A("  s_mov_b64 exec, -1")
    A("  s_branch LQsbr")
for n, ins in store2.tail:
    A(f"Lslow{n}:")
    A(f"  {ins} sc1")
    A(f"  s_branch Lsd{n}")
A("Lend:")
A("  s_endpgm")
L += footer(248, 100)
open(sys.argv[1], "w").write("\n".join(L) + "\n")
```

```python
import sys, struct, math
from common import *

opts = {}
for o in (sys.argv[2].split(",") if len(sys.argv) > 2 else []):
    k, _, v = o.partition("=")
    opts[k] = v
STAMPS = "stamps" in opts
NT = "" if "nont" in opts else " nt"
NTW = "" if ("nont" in opts or "nontw" in opts) else " nt"
SLOW = "slow" in opts
NPA = int(opts.get("npa", 6))
W1G = int(opts.get("w1g", 4))
BX = "nobx" not in opts
PIPE = "nopipe" not in opts
PIPEB = "pipeb" in opts

def f32(x): return "0x%08x" % struct.unpack("<I", struct.pack("<f", x))[0]

QS, HS, C2, BS, C1, QB, ST = 0x10000, 0x20000, 0x8000, 0x40000, 0x140000, 0x290000, 0x400000
SLOWOFF = 0x800000
L_Q = 0; L_H = 1280; L_G = 1296; L_F = 1304; L_ML = 1344; L_C = 1472; L_HF = 1308; L_JUNK = 1600; L_O = 2304
LDS_BYTES = L_O + 4 * 2304
SPIN = 0x100000
REUSE = "noreuse" not in opts
TAG2 = 0x5bd1e990
SKEWL = "noskew" not in opts

L = header(256, 384, LDS_BYTES); A = L.append
def stamp(k):
    if STAMPS: A(f"  s_memrealtime s[{64+2*k}:{65+2*k}]")
def stamp_store():
    if not STAMPS: return
    A("  s_waitcnt lgkmcnt(0)")
    A("  s_mul_i32 s60, s2, 6")
    A("  s_add_u32 s60, s60, s34")
    A("  s_lshl_b32 s60, s60, 7")
    A(f"  s_add_u32 s60, s60, {ST}")
    A("  v_mov_b32 v4, s60")
    A("  s_mov_b64 exec, 1")
    for k in range(16):
        A(f"  v_mov_b32 v6, s{64+2*k}")
        A(f"  v_mov_b32 v7, s{65+2*k}")
        A(f"  global_store_dwordx2 v4, v[6:7], s[30:31] offset:{8*k}")
        A("  s_nop 1")
def lgkm(n):
    A(f"  s_waitcnt lgkmcnt({0 if STAMPS else n})")
def tag_compute():
    A("  s_and_b32 s36, s35, 0xfffffff8")
    A("  s_add_u32 s36, s36, 0x9e3779b8")
def base58():
    A('  s_cmp_eq_u32 s57, 0')
    A(f'  s_cselect_b32 s58, {SLOWOFF}, 0')
    A('  s_add_u32 s58, s30, s58')
    A('  s_addc_u32 s59, s31, 0')
def store2(ins):
    n = store2.n; store2.n += 1
    A("  s_cmp_eq_u32 s57, 0")
    A(f"  s_cbranch_scc1 Lslow{n}")
    A(f"  {ins}{' nt' if 'stnt' in opts else ''}")
    A(f"Lsd{n}:")
    store2.tail.append((n, ins))
store2.n = 0; store2.tail = []
def red8(regs, tmp, op="add"):
    for r in regs: A(f"  v_{op}_f32_dpp v{r}, v{r}, v{r} row_ror:8 row_mask:0xf bank_mask:0xf")
    for sw in ("32", "16"):
        for r, t in zip(regs, tmp): A(f"  v_mov_b32 v{t}, v{r}")
        A(f"  s_nop {max(0, 2 - len(regs))}")
        for r, t in zip(regs, tmp): A(f"  v_permlane{sw}_swap_b32 v{r}, v{t}")
        for r, t in zip(regs, tmp): A(f"  v_{op}_f32 v{r}, v{r}, v{t}")
def mpoll(name, loads, checks, pend, cnt="s42"):
    n = len(loads)
    for p in pend: A(f"  s_mov_b64 {p}, -1")
    A(f"  s_mov_b32 {cnt}, 0")
    if PIPE:
        for ld in loads: A(f"  {ld}")
    A(f"L{name}poll:")
    for i, ld in enumerate(loads):
        A(f"  s_mov_b64 exec, {pend[i]}")
        if not PIPE: A(f"  s_cbranch_execz L{name}s{i}")
        A(f"  {ld}")
        A(f"L{name}s{i}:")
    A("  s_mov_b64 exec, -1")
    A(f"  s_add_u32 {cnt}, {cnt}, 1")
    A(f"  s_waitcnt vmcnt({n if PIPE else 0})")
    checks()
    A(f"  s_or_b64 s[40:41], {pend[0]}, {pend[1]}")
    A(f"  s_or_b64 vcc, {pend[2]}, {pend[3]}")
    A(f"  s_or_b64 s[40:41], s[40:41], vcc")
    A(f"  s_cbranch_scc0 L{name}got")
    A(f"  s_cmp_lt_u32 {cnt}, {SPIN}")
    A(f"  s_cbranch_scc1 L{name}poll")
    A(f"L{name}got:")

DR = 32; XM, AC = 96, 128
if STAMPS: A("  s_memrealtime s[64:65]")
A("  s_load_dwordx16 s[4:19], s[0:1], 0")
A("  s_load_dwordx8 s[20:27], s[0:1], 64")
A("  s_load_dwordx4 s[28:31], s[0:1], 96")
A("  v_lshrrev_b32 v1, 6, v0")
A("  v_and_b32 v2, 63, v0")
A("  s_cmp_ge_u32 s2, 256")
A("  v_readfirstlane_b32 s34, v1")
A("  s_cbranch_scc1 Lend")
A("  s_and_b32 s32, s2, 7")
A("  s_lshr_b32 s33, s2, 3")
A("  s_cmp_ge_u32 s34, 2")
A("  s_cbranch_scc1 LA")
A("  s_lshl_b32 s37, s32, 10")
A("  s_lshr_b32 s38, s33, 2")
A("  s_lshl_b32 s38, s38, 7")
A("  s_add_u32 s37, s37, s38")
A("  s_and_b32 s39, s33, 3")
A("  s_lshl_b32 s38, s39, 20")
A("  s_add_u32 s37, s37, s38")
A("  s_lshl_b32 s39, s39, 8")
A(f"  s_mul_i32 s38, s32, {(512//W1G)*3584}")
A("  s_lshl_b32 s40, s33, 7")
A("  s_add_u32 s38, s38, s40")
A(f"  s_lshl_b32 s40, s32, {7 if W1G == 8 else 8}")
A(f"  s_mov_b32 s52, {28672 if W1G == 8 else 57344}")
A("  s_movk_i32 s55, 3584")
A("  s_cmp_eq_u32 s34, 0")
A("  s_cselect_b32 s37, s37, s38")
A("  s_cselect_b32 s39, s39, s40")
A("  s_cselect_b32 s52, 0x20000, s52")
A("  s_cselect_b32 s55, 0x2000, s55")
if W1G == 8: A("  s_cselect_b32 s53, 5, 4")
A("  v_lshrrev_b32 v4, 3, v2")
A("  v_and_b32 v3, 7, v2")
A("  v_mul_u32_u24 v5, s52, v4")
A("  v_lshlrev_b32 v6, 4, v3")
A("  v_add3_u32 v5, v5, v6, s37")
if W1G == 8:
    A("  v_lshlrev_b32 v6, s53, v4")
    A("  v_add_u32 v6, s39, v6")
else:
    A("  v_lshl_add_u32 v6, v4, 5, s39")
A("  s_cbranch_scc1 Lnpf")
A("  s_getpc_b64 s[40:41]")
A("Lpc:")
A("  v_lshlrev_b32 v7, 7, v2")
A("  global_load_dword v27, v7, s[40:41]")
A("  v_add_u32 v7, 0x2000, v7")
A("  v_min_u32 v7, Lend-Lpc, v7")
A("  global_load_dword v27, v7, s[40:41]")
A("  s_cmp_ge_u32 s33, 28")
A("  s_cbranch_scc1 LMskip")
if W1G == 4:
    A("  s_cmp_ge_u32 s32, 4")
    A("  s_cbranch_scc1 LMskip")
A("  s_cmp_eq_u32 s34, 0")
A("Lnpf:")
A("  s_setprio 3")
A("  s_waitcnt lgkmcnt(0)")
stamp(1)
A("  s_cselect_b64 s[40:41], s[10:11], s[16:17]")
A("  global_load_dwordx4 v[8:11], v6, s[4:5]")
if W1G == 8: A("  s_cbranch_scc0 Lgo")
A("  global_load_dwordx4 v[12:15], v6, s[4:5] offset:16")
A("Lgo:")
for i in range(16):
    A(f"  global_load_dwordx4 v[{DR+4*i}:{DR+4*i+3}], v5, s[40:41]{NTW}")
    if i < 15: A(f"  v_add_u32 v5, s55, v5")
    if i == 7 and W1G == 8: A("  s_cbranch_scc0 LM")
if W1G == 4: A("  s_cbranch_scc0 LM")

B0K = int(opts.get("b0k", -1))
if B0K < 0: A("  s_barrier")
A("  s_load_dword s35, s[30:31], 0")
A("  s_getreg_b32 s39, hwreg(HW_REG_XCC_ID)")
stamp(2)
for c in range(8): A(f"  v_mov_b32 v{AC+c}, 0")
A("  s_and_b32 s39, s39, 7")
A("  s_lshl_b32 s37, s32, 13")
A(f"  s_add_u32 s37, s37, {QS}")
A("  s_lshl_b32 s38, s33, 8")
A("  s_add_u32 s38, s38, s37")
A("  v_lshrrev_b32 v5, 5, v2")
A("  v_lshlrev_b32 v5, 7, v5")
A("  v_lshl_add_u32 v5, v3, 4, v5")
A("  v_add_u32 v5, s38, v5")
A(f"  v_add_u32 v7, {QB-QS}, v5")
A("  v_lshlrev_b32 v6, 10, v4")
A("  v_lshl_add_u32 v6, v3, 4, v6")
A("  v_add_u32 v6, s37, v6")
A("  v_lshrrev_b32 v140, 4, v2")
A("  v_mul_u32_u24 v140, 320, v140")
A("  v_and_b32 v141, 15, v2")
A("  v_lshl_add_u32 v140, v141, 4, v140")
A("  s_lshl_b32 s37, s32, 17")
A("  s_lshl_b32 s38, s33, 12")
A("  s_add_u32 s37, s37, s38")
A(f"  s_add_u32 s37, s37, {C1}")
A("  v_lshl_add_u32 v141, v2, 4, s37")
if REUSE:
    A("  s_lshl_b32 s37, s32, 17")
    A("  s_lshl_b32 s38, s33, 7")
    A("  s_add_u32 s37, s37, s38")
    A(f"  s_add_u32 s37, s37, {BS}")
    A("  v_lshlrev_b32 v152, 12, v4")
    A("  v_lshl_add_u32 v152, v3, 4, v152")
    A("  v_add_u32 v152, s37, v152")
    for i in range(1, 4): A(f"  v_add_u32 v{152+i}, {0x8000*i}, v152")
    if SKEWL:
        A("  s_lshl_b32 s37, s32, 17")
        A(f"  s_add_u32 s37, s37, {BS}")
        for i in range(4):
            A(f"  v_add_u32 v156, {8*i}, v4")
            A("  v_add_u32 v157, s33, v156")
            A("  v_and_b32 v157, 31, v157")
            A("  v_lshlrev_b32 v156, 12, v156")
            A("  v_lshl_add_u32 v156, v157, 7, v156")
            A("  v_lshl_add_u32 v156, v3, 4, v156")
            A(f"  v_add_u32 v{152+i}, s37, v156")
A("  s_lshl_b32 s37, s33, 10")
A("  s_lshl_b32 s38, s32, 7")
A("  s_add_u32 s37, s37, s38")
A(f"  s_add_u32 s37, s37, {C2}")
A("  v_lshl_add_u32 v143, v2, 4, s37")
A("  v_lshlrev_b32 v142, 4, v3")
A(f"  v_add_u32 v142, {L_C}, v142")
A(f"  v_mov_b32 v144, {L_F}")
A("  s_mov_b32 s44, 0x07060503")
A("  s_mov_b32 s45, 0x07060502")
A("  s_mov_b32 s46, 0x07060501")
A("  s_mov_b32 s47, 0x04000c0c")
A("  s_mov_b32 s48, 0x0706000c")
A("  s_waitcnt vmcnt(16)")
def xmasks(n):
    for k in range(n):
        A(f"  v_and_b32 v{XM+4*k}, 0xffff, v{8+k}")
        A(f"  v_lshlrev_b32 v{XM+1+4*k}, 16, v{8+k}")
        A(f"  v_lshrrev_b32 v{XM+2+4*k}, 16, v{8+k}")
        A(f"  v_and_b32 v{XM+3+4*k}, 0xffff0000, v{8+k}")
def dots(n, extra, bar=-1):
    for i in range(n):
        A(f"  s_waitcnt vmcnt({n-1-i+extra})")
        if i == bar: A("  s_barrier")
        for c in range(4):
            A(f"  v_dot2c_f32_bf16 v{AC+2*c}, v{DR+4*i+c}, v{XM+2*i}")
            A(f"  v_dot2c_f32_bf16 v{AC+1+2*c}, v{DR+4*i+c}, v{XM+1+2*i}")
xmasks(8)
dots(16, 0, B0K)
stamp(4)
A("  s_waitcnt lgkmcnt(0)")
tag_compute()
A("  s_or_b32 s43, s36, s39")
for c in range(4): A(f"  v_permlane32_swap_b32 v{AC+c}, v{AC+4+c}")
for c in range(4): A(f"  v_add_f32 v{AC+c}, v{AC+c}, v{AC+4+c}")
for c in range(4): A(f"  v_add_f32_dpp v{AC+c}, v{AC+c}, v{AC+c} row_ror:8 row_mask:0xf bank_mask:0xf")
for c in range(4): A(f"  v_mov_b32 v{AC+4+c}, v{AC+c}")
for c in range(4): A(f"  v_permlane16_swap_b32 v{AC+c}, v{AC+4+c}")
for c in range(4): A(f"  v_add_f32 v{AC+c}, v{AC+c}, v{AC+4+c}")
for c in range(3): A(f"  v_perm_b32 v{AC+c}, v{AC+c}, v{AC+3}, s{44+c}")
A(f"  v_add3_u32 v{AC+3}, v{AC}, v{AC+1}, v{AC+2}")
A(f"  v_add_u32 v{AC+3}, s43, v{AC+3}")
A("  s_mov_b32 exec_lo, 0xff")
A("  s_mov_b32 exec_hi, 0xff")
A(f"  global_store_dwordx4 v5, v[{AC}:{AC+3}], s[30:31]")
LAZYB = "nolazy" not in opts
if not LAZYB: A(f"  global_store_dwordx4 v7, v[{AC}:{AC+3}], s[30:31] sc1")
A("  s_mov_b64 exec, -1")
stamp(5)
if BX: A("  s_barrier")
stamp(14)
PQ8 = [f"s[{4+2*i}:{5+2*i}]" for i in range(8)]
for p in PQ8: A(f"  s_mov_b64 {p}, -1")
A("  s_mov_b32 s42, 0")
SU = 64
BY = BX and "noby" not in opts
if BY:
    for gI in range(8):
        A(f"  global_load_dwordx4 v[{DR+gI*4}:{DR+gI*4+3}], v6, s[30:31] offset:{(gI>>1)*256+(gI&1)*128} sc1")
    A("  s_barrier")
    A("  s_branch LQiss")
A("LQpoll:")
A(f"  s_cmp_lt_u32 s42, {NPA}")
A("  s_cbranch_scc1 LQpa")
A(f"  v_xor_b32 v6, {QB^QS}, v6")
A("LQpa:")
for gI in range(8):
    ks, hf = gI >> 1, gI & 1
    r = DR + gI*4
    A(f"  s_mov_b64 exec, {PQ8[gI]}")
    A(f"  global_load_dwordx4 v[{r}:{r+3}], v6, s[30:31] offset:{ks*256+hf*128} sc1")
A("  s_mov_b64 exec, -1")
A("LQiss:")
A("  s_add_u32 s42, s42, 1")
stamp(3)
for gI in range(8):
    ks, hf = gI >> 1, gI & 1
    r = DR + gI*4
    A(f"  s_waitcnt vmcnt({7-gI})")
    A(f"  v_add3_u32 v{8+gI}, v{r}, v{r+1}, v{r+2}")
    A(f"  v_perm_b32 v{72+gI}, v{r}, v{r+1}, s47")
    A(f"  v_sub_u32 v{8+gI}, v{r+3}, v{8+gI}")
    A(f"  v_perm_b32 v{72+gI}, v{72+gI}, v{r+2}, s48")
    A(f"  v_xor_b32 v{8+gI}, s43, v{8+gI}")
    src = [r, r+1, r+2, 72+gI]
    if ks == 1:
        p = [r-8, r-7, r-6, 72+gI-2]
        for c in range(4): A(f"  v_add_f32 v{SU+4*hf+c}, v{p[c]}, v{src[c]}")
    elif ks >= 2:
        for c in range(4): A(f"  v_add_f32 v{SU+4*hf+c}, v{SU+4*hf+c}, v{src[c]}")
    A(f"  v_cmp_le_u32 {PQ8[gI]}, 8, v{8+gI}")
    if gI == 6:
        for c in range(2): A(f"  v_cvt_pk_bf16_f32 v{80+c}, v{SU+2*c}, v{SU+2*c+1}")
for c in range(2, 4): A(f"  v_cvt_pk_bf16_f32 v{80+c}, v{SU+2*c}, v{SU+2*c+1}")
A(f"  ds_write_b128 v140, v[80:83]")
A(f"  s_or_b64 s[40:41], {PQ8[0]}, {PQ8[1]}")
A(f"  s_or_b64 s[50:51], {PQ8[2]}, {PQ8[3]}")
A(f"  s_or_b64 s[52:53], {PQ8[4]}, {PQ8[5]}")
A(f"  s_or_b64 vcc, {PQ8[6]}, {PQ8[7]}")
A("  s_or_b64 s[40:41], s[40:41], s[50:51]")
A("  s_or_b64 vcc, vcc, s[52:53]")
A("  s_or_b64 s[40:41], s[40:41], vcc")
A("  s_cbranch_scc0 LQgot")
if LAZYB:
    A(f"  s_cmp_lg_u32 s42, {int(opts.get('lazyr', 2))}")
    A("  s_cbranch_scc1 LQnb")
    A("  s_mov_b32 exec_lo, 0xff")
    A("  s_mov_b32 exec_hi, 0xff")
    A(f"  global_store_dwordx4 v7, v[{AC}:{AC+3}], s[30:31] sc1")
    A("LQnb:")
A(f"  s_cmp_lt_u32 s42, {SPIN}")
A("  s_cbranch_scc1 LQpoll")
A("LQgot:")
A("  v_or3_b32 v8, v8, v9, v10")
A("  v_or3_b32 v11, v11, v12, v13")
A("  v_or3_b32 v8, v8, v14, v15")
A("  v_or_b32 v8, v8, v11")
A("  v_cmp_ne_u32 vcc, 0, v8")
A("  s_cmp_eq_u64 vcc, 0")
A("  s_cselect_b32 s57, 1, 0")
if SLOW: A("  s_mov_b32 s57, 0")
if LAZYB:
    A("  s_cmp_eq_u32 s57, 0")
    A("  s_cbranch_scc1 LQsb")
    A("LQsbr:")
A("  v_mov_b32 v4, s57")
A("  ds_write_b32 v144, v4")
if STAMPS: A("  s_mov_b32 s90, s42"); A("  s_mov_b32 s91, 0")
stamp(6)
A("  s_waitcnt lgkmcnt(0)")
A("  s_barrier")
base58()
A("  s_barrier")
stamp(7)
if "nob3" not in opts: A("  s_barrier")
PQ = ["s[44:45]", "s[46:47]", "s[48:49]", "s[50:51]"]
def chkF():
    for i in range(4): A(f"  v_add3_u32 v{24+i}, v{8+4*i}, v{9+4*i}, {'s39' if REUSE else 's36'}")
    A("  v_add_f32 v28, v8, v12")
    A("  v_add_f32 v29, v9, v13")
    for i in range(4): A(f"  v_cmp_ne_u32 {PQ[i]}, v{24+i}, v{10+4*i}")
    A("  v_add_f32 v30, v16, v20")
    A("  v_add_f32 v31, v17, v21")
    A("  v_add_f32 v28, v28, v30")
    A("  v_add_f32 v29, v29, v31")
if REUSE:
    A(f"  s_add_u32 s39, s36, {TAG2}")
    mpoll("F", [f"global_load_dwordx3 v[{8+4*i}:{10+4*i}], v{152+i}, s[58:59] sc1" for i in range(4)], chkF, PQ)
else:
    mpoll("F", [f"global_load_dwordx3 v[{8+4*i}:{10+4*i}], v141, s[58:59] offset:{1024*i} sc1" for i in range(4)], chkF, PQ)
stamp(8)
red8([28, 29], [36, 37])
A("  v_add3_u32 v30, v28, v29, s36")
A("  s_mov_b64 exec, 0xff")
A("  global_store_dwordx4 v143, v[28:31], s[30:31] sc1")
A("  ds_write_b96 v142, v[28:30]")
stamp(9)
stamp(11)
stamp_store()
A("  s_endpgm")

def gate_loads():
    A("  v_lshlrev_b32 v6, 4, v2")
    A("  global_load_dwordx4 v[16:19], v6, s[4:5]")
    A("  global_load_dwordx4 v[20:23], v6, s[24:25]")
    A("  s_lshl_b32 s37, s33, 5")
    A("  v_lshl_add_u32 v144, v3, 2, s37")
    A("  global_load_dword v145, v144, s[22:23]")
def gate_compute():
    for k in range(4):
        A(f"  v_lshlrev_b32 v{80+2*k}, 16, v{16+k}")
        A(f"  v_and_b32 v{81+2*k}, 0xffff0000, v{16+k}")
        A(f"  v_lshlrev_b32 v{88+2*k}, 16, v{20+k}")
        A(f"  v_and_b32 v{89+2*k}, 0xffff0000, v{20+k}")
    for k in range(8): A(f"  v_mul_f32 v{80+k}, v{80+k}, v{88+k}")
    for k in range(4): A(f"  v_cvt_pk_bf16_f32 v{88+k}, v{80+2*k}, v{81+2*k}")
    for k in range(4):
        A(f"  v_lshlrev_b32 v{80+2*k}, 16, v{88+k}")
        A(f"  v_and_b32 v{81+2*k}, 0xffff0000, v{88+k}")
    for k in range(4): A(f"  v_add_f32 v{80+2*k}, v{80+2*k}, v{81+2*k}")
    A("  v_add_f32 v80, v80, v82")
    A("  v_add_f32 v84, v84, v86")
    A("  v_add_f32 v80, v80, v84")
    for sw in ("32", "16"):
        A("  v_mov_b32 v81, v80")
        A("  s_nop 1")
        A(f"  v_permlane{sw}_swap_b32 v80, v81")
        A("  v_add_f32 v80, v80, v81")
    for r in (8, 4, 2, 1):
        A("  s_nop 1")
        A(f"  v_add_f32_dpp v80, v80, v80 row_ror:{r} row_mask:0xf bank_mask:0xf")
    A("  v_cvt_pk_bf16_f32 v80, v80, v80")
    A("  v_lshlrev_b32 v80, 16, v80")
    A(f"  v_mul_f32 v80, {f32(-math.log2(math.e))}, v80")
    A("  v_exp_f32 v80, v80")
    A("  s_nop 0")
    A("  v_add_f32 v80, 1.0, v80")
    A("  v_rcp_f32 v80, v80")
    A("  s_nop 0")
    A("  v_cvt_pk_bf16_f32 v80, v80, v80")
    A("  v_lshlrev_b32 v80, 16, v80")
    A("  v_sub_f32 v81, 1.0, v80")
    A("  v_cvt_pk_bf16_f32 v81, v81, v81")
    A("  v_lshlrev_b32 v81, 16, v81")
    A(f"  v_mov_b32 v82, {L_G}")
    A("  ds_write_b64 v82, v[80:81]")
A("LMskip:")
A("  s_waitcnt lgkmcnt(0)")
gate_loads()
A("  s_barrier")
A("  s_load_dword s35, s[30:31], 0")
A("  s_waitcnt vmcnt(0) lgkmcnt(0)")
tag_compute()
A("  s_mov_b32 s56, 0")
A("  s_branch LMgate")
A("LM:")
gate_loads()
A("  s_barrier")
A("  s_load_dword s35, s[30:31], 0")
stamp(2)
NM = 8 if W1G == 8 else 16
for c in range(8): A(f"  v_mov_b32 v{AC+c}, 0")
A("  s_lshl_b32 s37, s33, 12")
A(f"  s_add_u32 s37, s37, {HS}")
A("  s_lshl_b32 s38, s32, 9")
A("  s_add_u32 s38, s38, s37")
A("  v_lshl_add_u32 v5, v3, 3, v4")
A("  v_lshl_add_u32 v5, v5, 3, s38")
A(f"  s_waitcnt vmcnt({NM+3})")
xmasks(NM // 2)
dots(NM, 3)
stamp(3)
A("  s_waitcnt lgkmcnt(0)")
tag_compute()
for c in range(4): A(f"  v_permlane32_swap_b32 v{AC+c}, v{AC+4+c}")
for c in range(4): A(f"  v_add_f32 v{AC+c}, v{AC+c}, v{AC+4+c}")
A("  s_nop 0")
for c in range(2): A(f"  v_permlane16_swap_b32 v{AC+c}, v{AC+2+c}")
for c in range(2): A(f"  v_add_f32 v{AC+c}, v{AC+c}, v{AC+2+c}")
A("  s_nop 0")
A(f"  v_add_f32_dpp v{AC}, v{AC}, v{AC} row_ror:8 row_mask:0xf bank_mask:0x3")
A(f"  v_add_f32_dpp v{AC}, v{AC+1}, v{AC+1} row_ror:8 row_mask:0xf bank_mask:0xc")
A(f"  v_xor_b32 v{AC+1}, s36, v{AC}")
HE = "hlate" not in opts
if HE:
    A(f"  global_store_dwordx2 v5, v[{AC}:{AC+1}], s[30:31] sc1")
    A("  s_waitcnt vmcnt(1)")
else:
    A("  s_waitcnt vmcnt(0)")
    A("  s_mov_b32 s56, 1")
A("LMgate:")
gate_compute()
A("  s_min_u32 s49, s33, 27")
A("  s_lshl_b32 s37, s49, 12")
A("  s_lshl_b32 s38, s32, 6")
A("  s_add_u32 s38, s38, s37")
A(f"  s_add_u32 s38, s38, {HS}")
A(f"  v_and_b32 v146, {W1G-1}, v4")
A("  v_lshlrev_b32 v146, 9, v146")
A("  v_lshl_add_u32 v146, v3, 3, v146")
A("  v_add_u32 v146, s38, v146")
A("  s_lshl_b32 s37, s49, 7")
A("  s_lshl_b32 s38, s32, 4")
A("  s_add_u32 s37, s37, s38")
A("  v_lshl_add_u32 v147, v3, 1, s37")
A("  v_lshlrev_b32 v148, 1, v3")
A(f"  v_add_u32 v148, {L_H}, v148")
A("  s_lshl_b32 s37, s32, 17")
A("  s_lshl_b32 s38, s33, 12")
A("  s_add_u32 s37, s37, s38")
A(f"  s_add_u32 s37, s37, {BS}")
A("  v_lshl_add_u32 v8, v2, 4, s37")
A(f"  v_add_u32 v11, {C1-BS}, v8")
A(f"  v_mov_b32 v152, {L_HF}")
A("  v_mov_b32 v153, 0")
A("  ds_write_b32 v152, v153")
A("  global_load_ushort v149, v147, s[18:19]")
if BX: A("  s_barrier")
if not HE:
    A("  s_cmp_eq_u32 s56, 0")
    A("  s_cbranch_scc1 LMns")
    A(f"  global_store_dwordx2 v5, v[{AC}:{AC+1}], s[30:31] sc1")
    A("LMns:")
MPRE = "mpre" in opts
if BY and not MPRE: A("  s_barrier")
A("  global_load_dwordx2 v[150:151], v146, s[30:31] sc1")
for i in range(4): A(f"  global_load_dwordx4 v[{32+4*i}:{35+4*i}], v8, s[30:31] offset:{1024*i} sc1")
C1E = "c1late" not in opts and not REUSE
if C1E:
    for i in range(4): A(f"  global_load_dwordx4 v[{48+4*i}:{51+4*i}], v11, s[30:31] offset:{1024*i} sc1")
if BY and MPRE: A("  s_barrier")
A("  s_lshl_b32 s37, s33, 10")
A(f"  s_add_u32 s37, s37, {C2}")
A("  v_lshl_add_u32 v142, v2, 4, s37")
A("  v_lshlrev_b32 v143, 4, v3")
A(f"  v_add_u32 v143, {L_C}, v143")
A("  s_lshl_b32 s37, s32, 3")
A("  s_lshl_b64 s[46:47], 0xff, s37")
A("  v_lshlrev_b32 v84, 16, v145")
A("  v_and_b32 v85, 0xffff0000, v145")
A("  v_mul_f32 v84, v84, v81")
A("  v_mul_f32 v85, v85, v81")
A("  v_mov_b32 v12, 0")
A("  v_mov_b32 v13, 0")
A("  v_mov_b32 v14, 1")
A("  ds_write_b96 v143, v[12:14]")
A("  s_waitcnt lgkmcnt(0)")
stamp(4)
A("  s_barrier")
if not C1E and not REUSE:
    for i in range(4): A(f"  global_load_dwordx4 v[{48+4*i}:{51+4*i}], v11, s[30:31] offset:{1024*i} sc1")
A("  s_barrier")
A("  s_mov_b32 s42, 0")
A(f"  s_waitcnt vmcnt({4 if REUSE else 8})")
A("  s_branch LHchk")
A("LHpoll:")
A("  global_load_dwordx2 v[150:151], v146, s[30:31] sc1")
A("  s_add_u32 s42, s42, 1")
A("  s_waitcnt vmcnt(0)")
A("LHchk:")
A("  v_xor_b32 v9, v150, v151")
A("  v_cmp_ne_u32 vcc, s36, v9")
A("  s_cbranch_vccz LHgot")
A(f"  s_cmp_lt_u32 s42, {SPIN}")
A("  s_cbranch_scc1 LHpoll")
A("LHgot:")
A("  v_mov_b32 v8, v150")
A("  s_cmp_lt_u32 s33, 28")
A("  s_cselect_b32 s40, -1, 0")
if W1G == 8:
    red8([8], [9])
else:
    A("  v_add_f32_dpp v8, v8, v8 row_ror:8 row_mask:0xf bank_mask:0xf")
    A("  v_mov_b32 v9, v8")
    A("  s_nop 1")
    A("  v_permlane16_swap_b32 v8, v9")
    A("  v_add_f32 v8, v8, v9")
A("  v_cvt_pk_bf16_f32 v8, v8, v8")
A("  v_lshlrev_b32 v149, 16, v149")
A("  v_lshlrev_b32 v8, 16, v8")
A("  v_add_f32 v8, v8, v149")
A("  v_cvt_pk_bf16_f32 v8, v8, v8")
A("  v_lshlrev_b32 v8, 16, v8")
k1 = -2.0 * math.log2(math.e) * math.sqrt(2.0 / math.pi)
k2 = k1 * 0.044715
A(f"  s_mov_b32 s41, {f32(k2)}")
A(f"  v_mov_b32 v10, {f32(k1)}")
A("  v_mul_f32 v9, v8, v8")
A("  v_fma_f32 v9, v9, s41, v10")
A("  v_mul_f32 v9, v9, v8")
A("  v_exp_f32 v9, v9")
A("  s_nop 0")
A("  v_add_f32 v9, 1.0, v9")
A("  v_rcp_f32 v9, v9")
A("  s_nop 0")
A("  v_mul_f32 v8, v8, v9")
A("  s_nop 1")
A("  v_mov_b32_dpp v9, v8 quad_perm:[1,0,3,2] row_mask:0xf bank_mask:0xf")
A("  v_cvt_pk_bf16_f32 v8, v8, v9")
A("  v_and_b32 v8, s40, v8")
A("  s_mov_b64 exec, 0x55")
A("  ds_write_b32 v148, v8")
A("  s_mov_b64 exec, -1")
A("  v_mov_b32 v153, 1")
A("  ds_write_b32 v152, v153")
stamp(12)
if STAMPS: A("  s_mov_b32 s90, s42"); A("  s_mov_b32 s91, 0")
B3 = "nob3" not in opts
A("  s_and_b32 s37, s33, 7")
A("  s_cmp_lg_u32 s37, s32")
if B3:
    A("  s_cbranch_scc1 LMnf")
    A("  global_load_dwordx3 v[12:14], v142, s[30:31] sc1")
    A("LMnf:")
    A("  s_barrier")
A("  s_cbranch_scc1 LMend")
A("  s_mov_b64 s[44:45], -1")
A("  s_mov_b32 s42, 0")
if PIPE:
    A("  s_andn2_b64 exec, s[44:45], s[46:47]")
    A("  global_load_dwordx3 v[12:14], v142, s[30:31] sc1")
A("LGpoll:")
A("  s_andn2_b64 exec, s[44:45], s[46:47]")
if not PIPE: A("  s_cbranch_execz LGs0")
A("  global_load_dwordx3 v[12:14], v142, s[30:31] sc1")
A("LGs0:")
A("  s_and_b64 exec, s[44:45], s[46:47]")
A("  ds_read_b96 v[12:14], v143")
A("  s_mov_b64 exec, -1")
A("  s_add_u32 s42, s42, 1")
A(f"  s_waitcnt vmcnt({1 if PIPE else 0}) lgkmcnt(0)")
A("  v_add3_u32 v16, v12, v13, s36")
A("  v_mov_b32 v18, v12")
A("  v_mov_b32 v19, v13")
A("  v_cmp_ne_u32 s[44:45], v16, v14")
A("  s_cmp_lg_u64 s[44:45], 0")
A("  s_cbranch_scc0 LGgot")
A(f"  s_cmp_lt_u32 s42, {SPIN}")
A("  s_cbranch_scc1 LGpoll")
A("LGgot:")
stamp(10)
red8([18, 19], [10, 11])
A("  v_add_f32 v18, v18, v84")
A("  v_add_f32 v19, v19, v85")
A("  v_cvt_pk_bf16_f32 v8, v18, v19")
A("  s_mov_b64 exec, 0xff")
A("  global_store_dword v144, v8, s[26:27]")
A("  s_cmp_lg_u32 s2, 0")
A("  s_cbranch_scc1 LMend")
A("  s_mov_b64 exec, 1")
A("  v_mov_b32 v3, 0")
A("  v_mov_b32 v9, s36")
A("  global_store_dword v3, v9, s[30:31]")
A("LMend:")
stamp(11)
stamp_store()
A("  s_endpgm")

KR, VR, VP, WO, W2, QR, PS, SR, AO, AL, ONE, WP = 32, 64, 96, 128, 144, 152, 168, 184, 192, 200, 204, 208
for _ in range(int(opts.get("pad", 0))): A("  s_nop 0")
A("LA:")
A("  s_sub_u32 s43, s34, 2")
A("  s_lshl_b32 s54, s32, 24")
A("  s_lshl_b32 s38, s33, 15")
A("  s_add_u32 s54, s54, s38")
A("  s_lshl_b32 s38, s43, 13")
A("  s_add_u32 s54, s54, s38")
A(f"  s_add_u32 s54, s54, {61440*256}")
A("  v_and_b32 v3, 15, v2")
A("  v_lshrrev_b32 v4, 4, v2")
A("  v_lshlrev_b32 v9, 4, v3")
A("  s_lshl_b32 s37, s32, 19")
A("  s_lshl_b32 s38, s33, 14")
A("  s_add_u32 s37, s37, s38")
A("  s_lshl_b32 s38, s33, 16")
A("  s_lshl_b32 s39, s32, 13")
A("  s_add_u32 s38, s38, s39")
A("  s_lshl_b32 s39, s43, 8")
A("  s_cmp_lt_u32 s33, 28")
A("  s_cselect_b32 s38, s38, s37")
A("  v_lshl_add_u32 v10, v4, 12, v9")
A("  v_lshl_add_u32 v11, v4, 11, v9")
A("  v_add3_u32 v10, v10, s37, v1" if False else "  s_add_u32 s37, s37, s39")
A("  s_add_u32 s38, s38, s39")
A("  v_add_u32 v10, s37, v10")
A("  v_add_u32 v11, s38, v11")
A("  v_lshl_add_u32 v7, v4, 10, v9")
A("  v_add_u32 v7, s54, v7")
A("  v_add_u32 v8, 0x1000, v7")
A("  v_lshlrev_b32 v5, 8, v3")
A("  v_lshl_add_u32 v5, v4, 4, v5")
A("  v_add_u32 v5, s54, v5")
A("  v_add_u32 v6, 0x1000, v5")
A("  s_cmp_lt_u32 s33, 28")
A("  s_waitcnt lgkmcnt(0)")
A("  s_cselect_b64 s[20:21], s[20:21], s[12:13]")
A("  s_barrier")
stamp(1)
KTS = "kts" in opts
vk = [f"  global_load_dwordx4 v[{VR+(t*4+rr)*4}:{VR+(t*4+rr)*4+3}], v{7+t}, s[8:9] offset:{256*rr}{NT}" for t in range(2) for rr in range(4)]
vk += [f"  global_load_dwordx4 v[{KR+(t*4+s_)*4}:{KR+(t*4+s_)*4+3}], v{5+t}, s[6:7] offset:{64*s_}{NT}" for s_ in range(4) for t in range(2)]
_A = A
setup = []
A = setup.append
A("  s_load_dword s35, s[30:31], 0")
for i in range(16): A(f"  v_mov_b32 v{PS+i}, 0")
for i in range(4): A(f"  v_mov_b32 v{ONE+i}, 0x3f803f80")
A("  s_mov_b32 s44, 0x05040100")
A("  s_mov_b32 s45, 0x07060302")
for a in range(4):
    A(f"  s_mov_b32 s{46+2*a}, 0x{(0x000f000f << (4*a)):08x}")
    A(f"  s_mov_b32 s{47+2*a}, 0x{(0x000f000f << (4*a)):08x}")
A("  v_and_b32 v12, 3, v2")
A("  v_mul_u32_u24 v12, 320, v12")
A("  v_lshl_add_u32 v12, v4, 4, v12")
A("  s_mul_i32 s37, s43, 2304")
A(f"  s_add_u32 s37, s37, {L_O}")
A("  v_mul_u32_u24 v13, 544, v4")
A("  v_lshl_add_u32 v13, v3, 4, v13")
A("  v_add_u32 v13, s37, v13")
A("  s_lshl_b32 s37, s43, 3")
A(f"  s_add_u32 s37, s37, {L_ML}")
A("  v_lshl_add_u32 v14, v2, 5, s37")
A(f"  v_lshlrev_b32 v15, 3, v2")
A(f"  v_add_u32 v15, {L_JUNK}, v15")
A("  v_cmp_gt_u32 vcc, 4, v2")
A("  s_nop 1")
A("  v_cndmask_b32 v14, v15, v14, vcc")
A("  v_bfe_u32 v21, v2, 3, 2")
A("  v_lshrrev_b32 v22, 5, v2")
A("  s_lshl_b32 s37, s43, 1")
A("  v_add_u32 v22, s37, v22")
A("  v_and_b32 v23, 3, v2")
A("  v_mul_u32_u24 v15, 544, v23")
A("  v_lshl_add_u32 v15, v22, 5, v15")
A("  v_bfe_u32 v23, v2, 2, 1")
A("  v_lshl_add_u32 v15, v23, 4, v15")
A("  v_lshl_add_u32 v15, v21, 2, v15")
A(f"  v_add_u32 v15, {L_O}, v15")
A("  v_lshlrev_b32 v16, 5, v21")
A(f"  v_add_u32 v16, {L_ML}, v16")
A("  v_lshl_add_u32 v17, v21, 3, v22")
A("  v_lshlrev_b32 v17, 12, v17")
A("  v_and_b32 v23, 7, v2")
A("  v_lshl_add_u32 v17, v23, 4, v17")
A("  s_lshl_b32 s37, s32, 17")
A("  s_lshl_b32 s38, s33, 7")
A("  s_add_u32 s37, s37, s38")
A(f"  s_add_u32 s39, s37, {BS}")
A("  v_add_u32 v17, s39, v17")
if SKEWL:
    A("  v_lshl_add_u32 v17, v21, 3, v22")
    A("  v_add_u32 v24, s33, v17")
    A("  v_and_b32 v24, 31, v24")
    A("  v_lshlrev_b32 v17, 12, v17")
    A("  v_lshl_add_u32 v17, v24, 7, v17")
    A("  v_lshl_add_u32 v17, v23, 4, v17")
    A("  s_lshl_b32 s39, s32, 17")
    A(f"  s_add_u32 s39, s39, {BS}")
    A("  v_add_u32 v17, s39, v17")
A("  v_lshrrev_b32 v19, 1, v3")
A("  v_lshlrev_b32 v19, 12, v19")
A("  v_and_b32 v23, 1, v3")
A("  v_lshl_add_u32 v19, v23, 6, v19")
A("  v_lshl_add_u32 v19, v4, 4, v19")
A("  s_lshl_b32 s38, s43, 15")
A("  s_add_u32 s39, s37, s38")
A(f"  s_add_u32 s39, s39, {C1}")
A("  v_add_u32 v19, s39, v19")
if REUSE:
    A("  v_lshrrev_b32 v19, 1, v3")
    A("  v_lshlrev_b32 v19, 7, v19")
    A("  v_lshl_add_u32 v19, v23, 6, v19")
    A("  v_lshl_add_u32 v19, v4, 4, v19")
    A("  s_lshl_b32 s38, s43, 10")
    A("  s_lshl_b32 s39, s32, 17")
    A("  s_add_u32 s38, s38, s39")
    A("  s_lshl_b32 s39, s33, 12")
    A("  s_add_u32 s38, s38, s39")
    A(f"  s_add_u32 s38, s38, {BS}")
    A("  v_add_u32 v19, s38, v19")
    if SKEWL:
        A("  v_lshrrev_b32 v19, 1, v3")
        A("  s_lshl_b32 s38, s43, 3")
        A("  s_add_u32 s38, s38, s33")
        A("  v_add_u32 v19, s38, v19")
        A("  v_and_b32 v19, 31, v19")
        A("  v_lshlrev_b32 v19, 7, v19")
        A("  v_lshl_add_u32 v19, v23, 6, v19")
        A("  v_lshl_add_u32 v19, v4, 4, v19")
        A("  s_lshl_b32 s38, s32, 17")
        A("  s_lshl_b32 s39, s33, 12")
        A("  s_add_u32 s38, s38, s39")
        A(f"  s_add_u32 s38, s38, {BS}")
        A("  v_add_u32 v19, s38, v19")
A("  s_lshl_b32 s37, s32, 17")
A("  s_lshl_b32 s38, s33, 12")
A("  s_add_u32 s37, s37, s38")
A(f"  s_add_u32 s37, s37, {BS}")
A("  v_lshrrev_b32 v18, 1, v3")
A("  v_lshlrev_b32 v18, 7, v18")
A("  v_lshl_add_u32 v18, v23, 4, v18")
A("  v_lshl_add_u32 v18, v4, 5, v18")
A("  v_add_u32 v18, s37, v18")
A(f"  v_mov_b32 v20, {L_G}")
A("  v_lshlrev_b32 v9, 2, v4")
A(f"  v_add_u32 v9, {L_H}, v9")
c_sc = (128 ** -0.5) * math.log2(math.e)
if "nomimic" in opts:
    A(f"  s_mov_b32 s54, {f32(c_sc)}")
else:
    A(f"  s_mov_b32 s54, {f32(math.log2(math.e))}")
    A(f"  s_mov_b32 s60, {f32(128 ** -0.5)}")
    A(f"  s_mov_b32 s61, {f32(128 ** -0.5)}")
BA = 232; AA = 240
for c in range(16): A(f"  v_mov_b32 v{BA+c}, 0")
A = _A
IL0 = int(opts.get("il0", 6))
HB = int(opts.get("hb", 0))
NV = 16 - HB
per = -(-len(setup) // (NV - IL0))
k = 0
for i, x in enumerate(vk[:NV]):
    A(x)
    if i >= IL0 - 1 and i < NV - 1:
        n = per
        while k + n < len(setup) and ("vcc" in setup[k+n] or "s_nop" in setup[k+n]): n += 1
        for y in setup[k:k+n]: A(y)
        k += n
stamp(2)
if BX: A("  s_barrier")
for y in setup[k:]: A(y)
if BY: A("  s_barrier")
for x in vk[NV:]: A(x)
for i in range(4): A(f"  global_load_dwordx4 v[{WO+4*i}:{WO+4*i+3}], v10, s[12:13] offset:{1024*i}{NTW}")
for i in range(2): A(f"  global_load_dwordx4 v[{W2+4*i}:{W2+4*i+3}], v11, s[20:21] offset:{1024*i}{NTW}")
stamp(3)
for i in range(4):
    A(f"  s_waitcnt vmcnt({20-2*i})")
    t, rp = i >> 1, (i & 1) * 2
    for j in range(8):
        a = VR + (t*4+rp)*4 + (j >> 1); b = VR + (t*4+rp+1)*4 + (j >> 1)
        A(f"  v_perm_b32 v{VP+4*j+i}, v{b}, v{a}, s{44 + (j & 1)}")
A("  s_waitcnt lgkmcnt(0)")
tag_compute()
stamp(13)
if STAMPS:
    A("  s_waitcnt vmcnt(6)")
    stamp(12)
A("  s_barrier")
for s in range(4):
    A(f"  ds_read_b128 v[{QR+4*s}:{QR+4*s+3}], v12 offset:{64*s}")
A("  ds_read_b96 v[28:30], v20")
for s in range(4):
    A(f"  s_waitcnt vmcnt({6 + ((3-s) if KTS else (6-2*s))}) lgkmcnt({0 if STAMPS else 4-s})")
    if s == 3: stamp(5)
    for t in range(2):
        r = KR + (t*4+s)*4
        cin = "0" if s == 0 else f"v[{SR+4*t}:{SR+4*t+3}]"
        A(f"  v_mfma_f32_16x16x32_bf16 v[{SR+4*t}:{SR+4*t+3}], v[{r}:{r+3}], v[{QR+4*s}:{QR+4*s+3}], {cin}")
A("  s_waitcnt lgkmcnt(0)")
A("  v_readfirstlane_b32 s57, v30")
base58()
A(f"  s_add_u32 s55, s36, {TAG2}")
if "nomimic" in opts:
    A(f"  v_max3_f32 v21, v{SR}, v{SR+1}, v{SR+2}")
    A(f"  v_max3_f32 v22, v{SR+3}, v{SR+4}, v{SR+5}")
    A(f"  v_max3_f32 v21, v21, v{SR+6}, v{SR+7}")
    A(f"  v_max_f32 v21, v21, v22")
    for sw in ("32", "16"):
        A("  v_mov_b32 v22, v21")
        A("  s_nop 1")
        A(f"  v_permlane{sw}_swap_b32 v21, v22")
        A("  v_max_f32 v21, v21, v22")
    A("  v_mul_f32 v21, s54, v21")
    for i in range(8):
        A(f"  v_fma_f32 v{SR+i}, v{SR+i}, s54, -v21")
        if i >= 1: A(f"  v_exp_f32 v{SR+i-1}, v{SR+i-1}")
    A(f"  v_exp_f32 v{SR+7}, v{SR+7}")
else:
    T = QR
    A(f"  v_max3_f32 v21, v{SR}, v{SR+1}, v{SR+2}")
    A(f"  v_max3_f32 v22, v{SR+3}, v{SR+4}, v{SR+5}")
    A(f"  v_max3_f32 v21, v21, v{SR+6}, v{SR+7}")
    A(f"  v_max_f32 v21, v21, v22")
    A("  v_mov_b32 v22, v21")
    A(f"  v_cvt_pk_bf16_f32 v{T}, v{SR}, v{SR+1}")
    A(f"  v_cvt_pk_bf16_f32 v{T+1}, v{SR+2}, v{SR+3}")
    A("  v_permlane32_swap_b32 v21, v22")
    A("  v_max_f32 v21, v21, v22")
    A("  v_mov_b32 v22, v21")
    A(f"  v_cvt_pk_bf16_f32 v{T+2}, v{SR+4}, v{SR+5}")
    A(f"  v_cvt_pk_bf16_f32 v{T+3}, v{SR+6}, v{SR+7}")
    A("  v_permlane16_swap_b32 v21, v22")
    A("  v_max_f32 v21, v21, v22")
    A("  v_cvt_pk_bf16_f32 v21, v21, v21")
    for i in range(4):
        A(f"  v_lshlrev_b32 v{SR+2*i}, 16, v{T+i}")
        A(f"  v_and_b32 v{SR+2*i+1}, 0xffff0000, v{T+i}")
    A("  v_lshlrev_b32 v21, 16, v21")
    for i in range(4): A(f"  v_pk_mul_f32 v[{SR+2*i}:{SR+2*i+1}], v[{SR+2*i}:{SR+2*i+1}], s[60:61]")
    A("  v_mul_f32 v21, s60, v21")
    for i in range(4): A(f"  v_cvt_pk_bf16_f32 v{T+i}, v{SR+2*i}, v{SR+2*i+1}")
    A("  v_cvt_pk_bf16_f32 v21, v21, v21")
    A("  v_lshlrev_b32 v21, 16, v21")
    A("  v_mul_f32 v21, s54, v21")
    for i in range(4):
        A(f"  v_lshlrev_b32 v{SR+2*i}, 16, v{T+i}")
        A(f"  v_and_b32 v{SR+2*i+1}, 0xffff0000, v{T+i}")
        A(f"  v_fma_f32 v{SR+2*i}, v{SR+2*i}, s54, -v21")
        A(f"  v_fma_f32 v{SR+2*i+1}, v{SR+2*i+1}, s54, -v21")
        A(f"  v_exp_f32 v{SR+2*i}, v{SR+2*i}")
        A(f"  v_exp_f32 v{SR+2*i+1}, v{SR+2*i+1}")
for a in range(4):
    A(f"  s_mov_b64 exec, s[{46+2*a}:{47+2*a}]")
    for i in range(4):
        A(f"  v_cvt_pk_bf16_f32 v{PS+4*a+i}, v{SR+2*i}, v{SR+2*i+1}")
    A("  s_mov_b64 exec, -1")
    A("  s_nop 0")
    if a == 0: stamp(6)
    for e in range(2):
        j = 2*a + e
        cin = "0" if a == 0 else f"v[{AO+4*e}:{AO+4*e+3}]"
        A(f"  v_mfma_f32_16x16x32_bf16 v[{AO+4*e}:{AO+4*e+3}], v[{PS+4*a}:{PS+4*a+3}], v[{VP+4*j}:{VP+4*j+3}], {cin}")
    if a == 0:
        A(f"  v_mfma_f32_16x16x32_bf16 v[{AL}:{AL+3}], v[{ONE}:{ONE+3}], v[{PS}:{PS+3}], 0")
A(f"  ds_write2_b32 v14, v21, v{AL} offset0:0 offset1:1")
A("  s_nop 5")
A(f"  ds_write_b128 v13, v[{AO}:{AO+3}]")
A(f"  ds_write_b128 v13, v[{AO+4}:{AO+7}] offset:256")
A("  s_waitcnt lgkmcnt(0)")
stamp(7)
A("  s_barrier")
A(f"  ds_read_b128 v[{KR+8}:{KR+11}], v16")
A(f"  ds_read_b128 v[{KR+12}:{KR+15}], v16 offset:16")
for w in range(4):
    A(f"  ds_read2st64_b32 v[{KR+2*w}:{KR+2*w+1}], v15 offset0:{9*w} offset1:{9*w+1}")
lgkm(4)
m = [KR+8, KR+10, KR+12, KR+14]; l = [x+1 for x in m]
A(f"  v_max3_f32 v21, v{m[0]}, v{m[1]}, v{m[2]}")
A(f"  v_max_f32 v21, v21, v{m[3]}")
for w in range(4):
    A(f"  v_sub_f32 v{m[w]}, v{m[w]}, v21")
    if w >= 1: A(f"  v_exp_f32 v{m[w-1]}, v{m[w-1]}")
A(f"  v_exp_f32 v{m[3]}, v{m[3]}")
A(f"  v_mul_f32 v22, v{m[0]}, v{l[0]}")
for w in range(1, 4): A(f"  v_fmac_f32 v22, v{m[w]}, v{l[w]}")
A("  v_rcp_f32 v23, v22")
A("  v_log_f32 v22, v22")
lgkm(0)
A(f"  v_mul_f32 v{KR+16}, v{m[0]}, v{KR}")
A(f"  v_mul_f32 v{KR+17}, v{m[0]}, v{KR+1}")
for w in range(1, 4):
    A(f"  v_fmac_f32 v{KR+16}, v{m[w]}, v{KR+2*w}")
    A(f"  v_fmac_f32 v{KR+17}, v{m[w]}, v{KR+2*w+1}")
A(f"  v_add_f32 v{KR+18}, v21, v22")
A(f"  v_mul_f32 v{KR+16}, v{KR+16}, v23")
A(f"  v_mul_f32 v{KR+17}, v{KR+17}, v23")
A(f"  v_add_u32 v{KR+19}, s36, v{KR+18}")
A(f"  v_add3_u32 v{KR+19}, v{KR+16}, v{KR+17}, v{KR+19}")
store2(f"global_store_dwordx4 v17, v[{KR+16}:{KR+19}], s[58:59]")
stamp(8)
PB = VP
PA = ["s[46:47]", "s[48:49]", "s[50:51]", "s[52:53]"]
for i in range(4): A(f"  global_load_dwordx4 v[{PB+4*i}:{PB+4*i+3}], v18, s[58:59] offset:{1024*i} sc1")
A(f"  v_mov_b32 v25, {L_HF}")
A("  ds_read_b32 v25, v25")
A("  ds_read_b32 v24, v9")
A("  s_waitcnt vmcnt(5)")
for p in range(2):
    for c in range(4):
        a = WO + 8*p + c; b = a + 4
        A(f"  v_perm_b32 v{WP+8*p+2*c}, v{b}, v{a}, s44")
        A(f"  v_perm_b32 v{WP+8*p+2*c+1}, v{b}, v{a}, s45")
for c in range(4):
    a = W2 + c; b = a + 4
    A(f"  v_perm_b32 v{WP+16+2*c}, v{b}, v{a}, s44")
    A(f"  v_perm_b32 v{WP+16+2*c+1}, v{b}, v{a}, s45")
def redrq(b):
    for c in range(4): A(f"  v_permlane32_swap_b32 v{b+c}, v{b+4+c}")
    for c in range(4): A(f"  v_add_f32 v{b+c}, v{b+c}, v{b+4+c}")
    A("  s_nop 0")
    for c in range(2): A(f"  v_permlane16_swap_b32 v{b+c}, v{b+2+c}")
    for c in range(2): A(f"  v_add_f32 v{b+c}, v{b+c}, v{b+2+c}")
def bpart():
    for c in range(8): A(f"  v_dot2c_f32_bf16 v{BA+c}, v24, v{WP+16+c}")
    A("  s_nop 2")
    redrq(BA)
    A(f"  v_mul_f32 v{BA}, v{BA}, v29")
    A(f"  v_mul_f32 v{BA+1}, v{BA+1}, v29")
A("  s_waitcnt lgkmcnt(0)")
A("  v_readfirstlane_b32 s56, v25")
for p in PA: A(f"  s_mov_b64 {p}, -1")
A("  s_mov_b32 s42, 0")
A("  s_cmp_eq_u32 s56, 0")
A("  s_cbranch_scc1 LBnoh")
bpart()
A("LBnoh:")
stamp(9)
if not PIPEB: A("  s_branch LBchk")
A("LBpoll:")
for i in range(4):
    A(f"  s_mov_b64 exec, {PA[i]}")
    if not PIPEB: A(f"  s_cbranch_execz LBs{i}")
    A(f"  global_load_dwordx4 v[{PB+4*i}:{PB+4*i+3}], v18, s[58:59] offset:{1024*i} sc1")
    A(f"LBs{i}:")
A("  s_mov_b64 exec, -1")
A("  s_add_u32 s42, s42, 1")
A("  s_cmp_eq_u32 s56, 0")
A("  s_cbranch_scc1 Lhtry")
A("LBchk:")
A(f"  s_waitcnt vmcnt({4 if PIPEB else 0})")
ls = [PB+4*i+2 for i in range(4)]
for i in range(4): A(f"  v_add3_u32 v{PB+16+i}, v{PB+4*i}, v{PB+4*i+1}, v{PB+4*i+2}")
A(f"  v_max3_f32 v21, v{ls[0]}, v{ls[1]}, v{ls[2]}")
for i in range(4): A(f"  v_sub_u32 v{PB+16+i}, v{PB+4*i+3}, v{PB+16+i}")
A(f"  v_max_f32 v21, v21, v{ls[3]}")
for i in range(4): A(f"  v_cmp_ne_u32 {PA[i]}, s36, v{PB+16+i}")
A("  v_max_f32_dpp v21, v21, v21 row_ror:2 row_mask:0xf bank_mask:0xf")
A(f"  s_or_b64 s[40:41], {PA[0]}, {PA[1]}")
A(f"  s_or_b64 vcc, {PA[2]}, {PA[3]}")
A("  v_max_f32_dpp v21, v21, v21 row_ror:4 row_mask:0xf bank_mask:0xf")
A(f"  s_or_b64 s[40:41], s[40:41], vcc")
A(f"  s_cbranch_scc0 LBgot")
A(f"  s_cmp_lt_u32 s42, {SPIN}")
A(f"  s_cbranch_scc1 LBpoll")
A("LBgot:")
stamp(10)
A("  v_max_f32_dpp v21, v21, v21 row_ror:8 row_mask:0xf bank_mask:0xf")
lw = [PB+16+i for i in range(4)]
for i in range(4):
    A(f"  v_sub_f32 v{lw[i]}, v{ls[i]}, v21")
    if i >= 1: A(f"  v_exp_f32 v{lw[i-1]}, v{lw[i-1]}")
A(f"  v_exp_f32 v{lw[3]}, v{lw[3]}")
ls = lw
A(f"  v_mul_f32 v22, v{ls[0]}, v{PB}")
A(f"  v_mul_f32 v23, v{ls[0]}, v{PB+1}")
A(f"  v_add_f32 v21, v{ls[0]}, v{ls[1]}")
for i in range(1, 4):
    if i >= 2: A(f"  v_add_f32 v21, v21, v{ls[i]}")
    A(f"  v_fmac_f32 v22, v{ls[i]}, v{PB+4*i}")
    A(f"  v_fmac_f32 v23, v{ls[i]}, v{PB+4*i+1}")
for r in (2, 4, 8):
    for x in (21, 22, 23):
        A(f"  v_add_f32_dpp v{x}, v{x}, v{x} row_ror:{r} row_mask:0xf bank_mask:0xf")
A("  v_rcp_f32 v21, v21")
A("  s_nop 0")
A("  v_mul_f32 v22, v22, v21")
A("  v_mul_f32 v23, v23, v21")
A("  v_cvt_pk_bf16_f32 v22, v22, v23")
A("  s_nop 1")
for p in range(2):
    for c in range(8):
        A(f"  v_dot2c_f32_bf16_dpp v{AA+c}, v22, v{WP+8*p+c} quad_perm:[{p},{p},{p},{p}] row_mask:0xf bank_mask:0xf")
A("  s_nop 2")
redrq(AA)
A("  s_cmp_eq_u32 s56, 0")
A("  s_cbranch_scc1 Lhlate")
A("Lhback:")
A(f"  v_fma_f32 v24, v{AA}, v28, v{BA}")
A(f"  v_fma_f32 v25, v{AA+1}, v28, v{BA+1}")
A(f"  v_add3_u32 v26, v24, v25, {'s55' if REUSE else 's36'}")
if REUSE: A("  s_barrier")
store2("global_store_dwordx4 v19, v[24:27], s[58:59]")
stamp(11)
if B3 and not REUSE: A("  s_barrier")
stamp_store()
A("  s_endpgm")
A("Lhtry:")
A(f"  v_mov_b32 v25, {L_HF}")
A("  ds_read_b32 v25, v25")
A("  ds_read_b32 v24, v9")
A("  s_waitcnt lgkmcnt(0)")
A("  v_readfirstlane_b32 s56, v25")
A("  s_cmp_eq_u32 s56, 0")
A("  s_cbranch_scc1 LBchk")
bpart()
A("  s_branch LBchk")
A("Lhlate:")
A("  s_mov_b32 s42, 0")
A("Lhl2:")
A(f"  v_mov_b32 v25, {L_HF}")
A("  ds_read_b32 v25, v25")
A("  ds_read_b32 v24, v9")
A("  s_add_u32 s42, s42, 1")
A("  s_waitcnt lgkmcnt(0)")
A("  v_readfirstlane_b32 s56, v25")
A(f"  s_cmp_ge_u32 s42, {SPIN}")
A("  s_cbranch_scc1 Lhl3")
A("  s_cmp_eq_u32 s56, 0")
A("  s_cbranch_scc1 Lhl2")
A("Lhl3:")
bpart()
A("  s_branch Lhback")
if LAZYB:
    A("LQsb:")
    A("  s_mov_b32 exec_lo, 0xff")
    A("  s_mov_b32 exec_hi, 0xff")
    A(f"  global_store_dwordx4 v7, v[{AC}:{AC+3}], s[30:31] sc1")
    A("  s_mov_b64 exec, -1")
    A("  s_branch LQsbr")
for n, ins in store2.tail:
    A(f"Lslow{n}:")
    A(f"  {ins} sc1")
    A(f"  s_branch Lsd{n}")
A("Lend:")
A("  s_endpgm")
L += footer(248, 100)
open(sys.argv[1], "w").write("\n".join(L) + "\n")
```
